```python
import torch

def _softmax(x, axis=-1):
    return torch.softmax(x, dim=axis)
def _gelu(x):
    return torch.nn.functional.gelu(x, approximate="tanh")
def _silu(x):
    return torch.nn.functional.silu(x)
def _sigmoid(x):
    return torch.sigmoid(x)
def _layernorm(x, axis=-1, eps=1e-5):
    m = x.mean(dim=axis, keepdim=True)
    v = x.var(dim=axis, keepdim=True, unbiased=False)
    return (x - m) / torch.sqrt(v + eps)
def _scatter_add(tgt, idx, src, axis=0):
    return tgt.clone().index_add_(axis, idx, src)
def _segment_sum(src, seg, n):
    out = torch.zeros((n,) + src.shape[1:], dtype=src.dtype)
    return out.index_add_(0, seg, src)
def _pad(x, pw):
    flat = tuple(v for pair in reversed(pw) for v in pair)
    return torch.nn.functional.pad(x, flat)

kernel_name = 'standalone__edge_featured_mpnn_gatedgcn__graph'

def setup_inputs():

    _w = (lambda a: (lambda t: t.to(torch.bfloat16) if t.is_floating_point() else t)(torch.as_tensor(a)))
    N, deg, D, De = 12500, 64, 64, max(16, 1)
    E = N * deg
    return {
        "x": _w((lambda *s: torch.randn(*s, dtype=torch.bfloat16) * 0.8)(N, D)),
        "e_attr": _w((lambda *s: torch.randn(*s, dtype=torch.bfloat16) * 0.8)(E, De)),
        "src": _w((lambda lo, hi, *s: torch.randint(lo, hi, s))(0, N, E).to(torch.int64)),
        "dst": _w((lambda lo, hi, *s: torch.randint(lo, hi, s))(0, N, E).to(torch.int64)),
        "w_a": _w((lambda *s: torch.randn(*s, dtype=torch.bfloat16) * 0.8)(D, D)),
        "w_b": _w((lambda *s: torch.randn(*s, dtype=torch.bfloat16) * 0.8)(D, D)),
        "w_c": _w((lambda *s: torch.randn(*s, dtype=torch.bfloat16) * 0.8)(De, D)),
        "w_u": _w((lambda *s: torch.randn(*s, dtype=torch.bfloat16) * 0.05)(D, D)),
        "w_v": _w((lambda *s: torch.randn(*s, dtype=torch.bfloat16) * 0.05)(D, D)),
    }

def reference(x, e_attr, src, dst, w_a, w_b, w_c, w_u, w_v):
    N, D = x.shape
    hv = x @ w_v
    g = x[dst] @ w_a + x[src] @ w_b + e_attr @ w_c
    eta = _sigmoid(g)
    denom = _segment_sum(eta, dst, N) + 1e-6
    eta_n = eta / denom[dst]
    agg = _segment_sum(eta_n * hv[src], dst, N)
    z = x @ w_u + agg
    relu_z = torch.where(z > 0, z, 0 * z)
    return x + relu_z
```

```python
class Asm:
    def __init__(self):
        self.L = []
        self.nlab = 0
    def __call__(self, s):
        for line in s.strip("\n").split("\n"):
            self.L.append("    " + line.strip())
    def raw(self, s):
        self.L.append(s)
    def label(self, name):
        self.L.append(name + ":")
    def newlabel(self, base="L"):
        self.nlab += 1
        return f"{base}_{self.nlab}"
    def c(self, s):
        self.L.append("    ; " + s)
    def text(self):
        return "\n".join(self.L) + "\n"
    def srd(self, d, lo, hi, size):
        self(f"s_mov_b32 s{d}, s{lo}")
        self(f"s_and_b32 s{d+1}, s{hi}, 0xffff")
        self(f"s_mov_b32 s{d+2}, {size}")
        self(f"s_mov_b32 s{d+3}, 0x20000")

def vr(a, n):
    return f"v[{a}:{a+n-1}]"
def ar(a, n):
    return f"a[{a}:{a+n-1}]"
def sr(a, n):
    return f"s[{a}:{a+n-1}]"

def kdesc(name, vgpr, sgpr, accum):
    return f""".p2align 6
.amdhsa_kernel {name}
  .amdhsa_next_free_vgpr {vgpr}
  .amdhsa_next_free_sgpr {sgpr}
  .amdhsa_accum_offset {accum}
  .amdhsa_group_segment_fixed_size 0
  .amdhsa_kernarg_size 96
  .amdhsa_user_sgpr_count 2
  .amdhsa_user_sgpr_kernarg_segment_ptr 1
  .amdhsa_system_sgpr_workgroup_id_x 1
  .amdhsa_float_denorm_mode_32 3
.end_amdhsa_kernel
"""
```

```python
from asmlib import *
N=12500; E=800000; CH=3125; BN=49
WS_SLOTS=0; WS_COMPACT=0x800000; WS_W=0xC00000
K1_LINES=0; K1_CNT=32768; K1_FLAG=32768+1024; K1_START=32768+2048; K1_LDS=32768+4096

def gen_k1(name="bucket_kernel"):
    a=Asm()
    a.raw(f".globl {name}\n.p2align 8\n.type {name},@function\n{name}:")
    a("s_cmp_gt_u32 s2, 256")
    a("s_cbranch_scc1 K1_END")
    a("s_load_dwordx4 s[4:7], s[0:1], 16")
    a("s_load_dwordx2 s[8:9], s[0:1], 88")
    a("s_cmp_eq_u32 s2, 256")
    a("s_cbranch_scc1 K1_WEIGHTS")
    a.c("zero LDS lines + counters")
    a("""
    v_lshlrev_b32 v1, 4, v0
    v_mov_b32 v4, 0
    v_mov_b32 v5, 0
    v_mov_b32 v6, 0
    v_mov_b32 v7, 0
    v_lshlrev_b32 v2, 2, v0
    ds_write_b128 v1, v[4:7]
    ds_write_b128 v1, v[4:7] offset:16384
    """)
    a(f"ds_write_b32 v2, v4 offset:{K1_CNT}")
    a("s_mul_i32 s10, s2, 12500")
    a("s_waitcnt lgkmcnt(0)")
    a.c("SRDs: dst s[12:15], src s[16:19], ws s[20:23]")
    a("""
    s_add_u32 s12, s6, s10
    s_addc_u32 s13, s7, 0
    s_and_b32 s13, s13, 0xffff
    s_mov_b32 s14, 12500
    s_mov_b32 s15, 0x20000
    s_add_u32 s16, s4, s10
    s_addc_u32 s17, s5, 0
    s_and_b32 s17, s17, 0xffff
    s_mov_b32 s18, 12500
    s_mov_b32 s19, 0x20000
    buffer_load_dwordx4 v[8:11], v1, s[12:15], 0 offen
    buffer_load_dwordx4 v[12:15], v1, s[16:19], 0 offen
    """)
    a.srd(20, 8, 9, WS_COMPACT + 256*12500)
    a("s_barrier")
    a.c("eloc_k = 4*tid+k ; valid masks s[24+2k:25+2k]")
    a("v_lshlrev_b32 v3, 2, v0")
    for k in range(4):
        a(f"v_add_u32 v{16+k}, {k}, v3")
    for k in range(4):
        a(f"v_cmp_gt_u32 s[{24+2*k}:{25+2*k}], s14, v{16+k}") if False else None
    a("s_movk_i32 s11, 3125")
    for k in range(4):
        a(f"v_cmp_gt_u32 s[{24+2*k}:{25+2*k}], s11, v{16+k}")
    a("v_mov_b32 v40, 1")
    a("s_movk_i32 s10, 21400")
    a("s_waitcnt vmcnt(1)")
    for k in range(4):
        a(f"v_mul_u32_u24 v{20+k}, s10, v{8+k}")
    for k in range(4):
        a(f"v_lshrrev_b32 v{20+k}, 20, v{20+k}")
    for k in range(4):
        a(f"v_mul_u32_u24 v{24+k}, 49, v{20+k}")
        a(f"v_lshlrev_b32 v{28+k}, 2, v{20+k}")
    for k in range(4):
        a(f"s_mov_b64 exec, s[{24+2*k}:{25+2*k}]")
        a(f"ds_add_rtn_u32 v{32+k}, v{28+k}, v40 offset:{K1_CNT}")
    a("s_mov_b64 exec, -1")
    for k in range(4):
        a(f"v_sub_u32 v{24+k}, v{8+k}, v{24+k}")
        a(f"v_lshl_add_u32 v{16+k}, v{16+k}, 6, v{24+k}")
    a("s_waitcnt vmcnt(0)")
    for k in range(4):
        a(f"v_lshl_add_u32 v{16+k}, v{12+k}, 18, v{16+k}")
        a(f"v_add_u32 v{16+k}, 1, v{16+k}")
        a(f"v_lshlrev_b32 v{24+k}, 7, v{20+k}")
    a("s_waitcnt lgkmcnt(0)")
    for k in range(4):
        a(f"v_lshl_add_u32 v{24+k}, v{32+k}, 2, v{24+k}")
    a("s_mov_b64 s[34:35], 0")
    for k in range(4):
        a(f"v_cmp_gt_u32 vcc, 32, v{32+k}")
        a(f"s_and_b64 exec, vcc, s[{24+2*k}:{25+2*k}]")
        a(f"ds_write_b32 v{24+k}, v{16+k}")
        a(f"s_andn2_b64 s[36:37], s[{24+2*k}:{25+2*k}], vcc")
        a("s_or_b64 s[34:35], s[34:35], s[36:37]")
        a("s_mov_b64 exec, -1")
    a.c("any overflow in this wave -> set flag")
    a("s_cmp_eq_u64 s[34:35], 0")
    a("s_cbranch_scc1 K1_NOFLAG")
    a(f"v_mov_b32 v41, {K1_FLAG}")
    a("ds_write_b32 v41, v40")
    a.label("K1_NOFLAG")
    a("s_waitcnt lgkmcnt(0)")
    a("s_barrier")
    a(f"v_mov_b32 v41, {K1_FLAG}")
    a("ds_read_b32 v42, v41")
    a("ds_read_b128 v[44:47], v1")
    a("ds_read_b128 v[48:51], v1 offset:16384")
    a.c("global offsets for copy-out: line b = (i*1024+tid)>>3")
    a("""
    v_lshrrev_b32 v52, 3, v0
    v_and_b32 v53, 7, v0
    v_lshlrev_b32 v53, 4, v53
    v_add_u32 v54, s2, v52
    v_and_b32 v55, 255, v54
    v_lshl_add_u32 v55, v55, 7, v53
    v_lshl_add_u32 v55, v52, 15, v55
    v_add_u32 v54, 128, v54
    v_and_b32 v54, 255, v54
    v_lshl_add_u32 v54, v54, 7, v53
    v_add_u32 v52, 128, v52
    v_lshl_add_u32 v54, v52, 15, v54
    """)
    a("s_waitcnt lgkmcnt(2)")
    a("v_readfirstlane_b32 s10, v42")
    a("s_nop 3")
    a("s_cmp_lg_u32 s10, 0")
    a("s_cbranch_scc1 K1_SLOW")
    a.label("K1_COPY")
    a("s_waitcnt lgkmcnt(0)")
    a("buffer_store_dwordx4 v[44:47], v55, s[20:23], 0 offen")
    a("buffer_store_dwordx4 v[48:51], v54, s[20:23], 0 offen")
    a("s_endpgm")
    a.label("K1_SLOW")
    a.c("exclusive prefix of cnt for thread t<256 (brute force)")
    a("s_waitcnt lgkmcnt(0)")
    a("v_mov_b32 v56, 0")
    a("s_mov_b32 s10, 0")
    a.label("K1_SLOOP")
    a(f"s_lshl_b32 s11, s10, 2")
    a(f"s_add_u32 s11, s11, {K1_CNT}")
    a("v_mov_b32 v57, s11")
    a("ds_read_b32 v58, v57")
    a("v_cmp_lt_u32 vcc, s10, v0")
    a("s_waitcnt lgkmcnt(0)")
    a("s_nop 0")
    a("v_cndmask_b32 v58, 0, v58, vcc")
    a("v_add_u32 v56, v56, v58")
    a("s_add_u32 s10, s10, 1")
    a("s_cmp_lt_u32 s10, 256")
    a("s_cbranch_scc1 K1_SLOOP")
    a("v_cmp_gt_u32 vcc, 0x100, v0")
    a("s_and_saveexec_b64 s[38:39], vcc")
    a("s_cbranch_execz K1_S1")
    a(f"ds_write_b32 v2, v56 offset:{K1_START}")
    a(f"ds_read_b32 v57, v2 offset:{K1_CNT}")
    a("s_waitcnt lgkmcnt(0)")
    a("v_cmp_lt_u32 vcc, 32, v57")
    a("s_and_b64 exec, exec, vcc")
    a("s_cbranch_execz K1_S1")
    a.c("overflowed line t := marker, zeros")
    a("v_lshlrev_b32 v58, 7, v0")
    for i in range(8):
        a(f"ds_write_b128 v58, v[4:7] offset:{16*i}")
    a("v_lshlrev_b32 v59, 6, v56")
    a("v_lshl_add_u32 v59, v57, 18, v59")
    a("v_or_b32 v59, 63, v59")
    a("ds_write_b32 v58, v59")
    a.label("K1_S1")
    a("s_mov_b64 exec, -1")
    a("s_waitcnt lgkmcnt(0)")
    a("s_barrier")
    a.c("records of overflowed buckets -> compact list")
    a("s_mul_i32 s10, s2, 12500")
    a(f"s_add_u32 s10, s10, {WS_COMPACT}")
    for k in range(4):
        lab=a.newlabel("K1_SK")
        a(f"s_mov_b64 exec, s[{24+2*k}:{25+2*k}]")
        a(f"s_cbranch_execz {lab}")
        a(f"ds_read_b32 v57, v{28+k} offset:{K1_CNT}")
        a(f"ds_read_b32 v58, v{28+k} offset:{K1_START}")
        a("s_waitcnt lgkmcnt(0)")
        a("v_cmp_lt_u32 vcc, 32, v57")
        a("s_and_b64 exec, exec, vcc")
        a(f"s_cbranch_execz {lab}")
        a(f"v_add_u32 v58, v58, v{32+k}")
        a("v_lshlrev_b32 v58, 2, v58")
        a(f"buffer_store_dword v{16+k}, v58, s[20:23], s10 offen")
        a.label(lab)
        a("s_mov_b64 exec, -1")
    a("ds_read_b128 v[44:47], v1")
    a("ds_read_b128 v[48:51], v1 offset:16384")
    a("s_branch K1_COPY")
    a.label("K1_WEIGHTS")
    a("s_load_dwordx8 s[12:19], s[0:1], 32")
    a("s_load_dwordx2 s[20:21], s[0:1], 64")
    a("""
    v_lshrrev_b32 v1, 6, v0
    v_and_b32 v2, 63, v0
    v_and_b32 v3, 31, v2
    v_lshrrev_b32 v4, 5, v2
    """)
    a("v_readfirstlane_b32 s22, v1")
    a("s_waitcnt lgkmcnt(0)")
    a.srd(28, 8, 9, WS_W + 34*1024)
    for r in range(3):
        skip=a.newlabel("K1_WSK")
        a(f"s_add_u32 s23, s22, {16*r}")
        a("s_cmp_ge_u32 s23, 34")
        a(f"s_cbranch_scc1 {skip}")
        done=a.newlabel("K1_WSEL")
        for (lo,hi,base,khm,size) in ((0,8,14,32,8192),(8,16,20,32,8192),(16,18,16,8,2048),(18,26,12,32,8192),(26,34,18,32,8192)):
            nxt=a.newlabel("K1_WN")
            a(f"s_cmp_ge_u32 s23, {hi}")
            a(f"s_cbranch_scc1 {nxt}")
            a(f"s_mov_b32 s24, s{base}")
            a(f"s_and_b32 s25, s{base+1}, 0xffff")
            a(f"s_mov_b32 s26, {size}")
            a(f"s_mov_b32 s27, 0x20000")
            a(f"s_sub_u32 s33, s23, {lo}")
            a(f"s_mov_b32 s34, {khm*128}")
            a(f"s_branch {done}")
            a.label(nxt)
        a("s_endpgm")
        a.label(done)
        a("""
        s_lshr_b32 s35, s33, 1
        s_and_b32 s36, s33, 1
        s_lshl_b32 s35, s35, 10
        s_lshl_b32 s36, s36, 6
        s_add_u32 s35, s35, s36
        v_mul_lo_u32 v5, v4, s34
        v_lshl_add_u32 v5, v3, 1, v5
        """)
        for i in range(8):
            a(f"buffer_load_ushort v{8+i}, v5, s[24:27], s35 offen offset:{128*i}")
        a("s_lshl_b32 s37, s23, 10")
        a(f"s_add_u32 s37, s37, {WS_W}")
        a("v_lshlrev_b32 v6, 4, v2")
        a("s_waitcnt vmcnt(0)")
        for i in range(4):
            a(f"v_lshl_or_b32 v{16+i}, v{9+2*i}, 16, v{8+2*i}")
        a("buffer_store_dwordx4 v[16:19], v6, s[28:31], s37 offen")
        a("s_nop 1")
        a.label(skip)
    a.label("K1_END")
    a("s_endpgm")
    return a.text(), kdesc(name, 64, 48, 64)
```

```python
from asmlib import *
from k1 import WS_SLOTS, WS_COMPACT, WS_W
N=12500; E=800000
OVF=0; MASK=1056; DESC=2144; NODE=4400; HIST=42800; LIST_S=43056; LIST_E=61040; STAGE=97024; K3_LDS=162560
TAB=STAGE; CC=TAB//16
assert LIST_E+281*128<=STAGE and STAGE+65536==K3_LDS and HIST+256==LIST_S and NODE+50*768==HIST
G=[16,48]; H=[32,64]; T=80; MK=96; X=112; EE=[128,132]
XRD=136; CCH=140; KH16=144; LOFF=145; AS=146; AE=147; AD=148; VM=149
SRC4=150; EID=152; VD=153; NODEA=[154,155]; AN=[156,158]; XEPI=160; CL2E=2; CONE=14; DEN=4; NUM=6
WB=0; WV=32; WC=64; AU=72
sXB=12; sEA=16; sWS=20; sOUT=24; sWAVE=28; sNODE0=29; sSTEP=30; sCNT=31; sST0=33; sST1=34; s128=35; sCC=36
sREC=40; sM=48

def mfma(d, a_, b_, c):
    cs = "0" if c is None else vr(c,16)
    return f"v_mfma_f32_32x32x16_bf16 {vr(d,16)}, {vr(a_,4)}, {ar(b_,4)}, {cs}"

def valu_block(blk):
    g=G[blk]; h=H[blk]; an=AN[blk]
    pk_t=[f"v_pk_fma_f32 {vr(T+2*i,2)}, {vr(g+2*i,2)}, {vr(CL2E,2)}, {vr(an,2)} op_sel_hi:[1,1,0]" for i in range(8)]
    ex=[f"v_exp_f32 v{T+i}, v{T+i}" for i in range(16)]
    pk_a=[f"v_pk_add_f32 {vr(T+2*i,2)}, {vr(T+2*i,2)}, {vr(CONE,2)}" for i in range(8)]
    rc=[f"v_rcp_f32 v{T+i}, v{T+i}" for i in range(16)]
    acc=[f"v_pk_add_f32 {vr(DEN,2)}, {vr(T,2)}, {vr(T+2,2)}",
         f"v_pk_mul_f32 {vr(NUM,2)}, {vr(T,2)}, {vr(h,2)}",
         f"v_pk_fma_f32 {vr(NUM,2)}, {vr(T+2,2)}, {vr(h+2,2)}, {vr(NUM,2)}"]
    for i in range(2,8):
        acc.append(f"v_pk_add_f32 {vr(DEN,2)}, {vr(T+2*i,2)}, {vr(DEN,2)}")
        acc.append(f"v_pk_fma_f32 {vr(NUM,2)}, {vr(T+2*i,2)}, {vr(h+2*i,2)}, {vr(NUM,2)}")
    return pk_t,ex,pk_a,rc,acc

def issue_loads(a, b):
    o=[]
    o.append(f"s_mov_b32 m0, s{sST0 if b==0 else sST1}")
    o.append(f"v_mad_u32_u16 v8, v{SRC4}, s{s128}, v{CCH}")
    o.append(f"v_mad_u32_u16 v9, v{SRC4}, s{s128}, v{CCH+1} op_sel:[1,0,0,0]")
    o.append(f"v_mad_u32_u16 v10, v{SRC4+1}, s{s128}, v{CCH+2}")
    o.append(f"v_mad_u32_u16 v11, v{SRC4+1}, s{s128}, v{CCH+3} op_sel:[1,0,0,0]")
    o.append(f"v_lshl_add_u32 v12, v{EID}, 5, v{KH16}")
    for i in range(4):
        o.append(f"buffer_load_dwordx4 v{8+i}, {sr(sXB,4)}, 0 offen offset:{1024*i} lds")
    o.append(f"buffer_load_dwordx4 {vr(EE[b],4)}, v12, {sr(sEA,4)}, 0 offen")
    return o

def read_list(koff):
    return [f"ds_read_b64 {vr(SRC4,2)}, v{AS} offset:{LIST_S+512*koff}",
            f"ds_read_b32 v{EID}, v{AE} offset:{LIST_E+1024*koff}"]

def read_operands(bn):
    o=[]
    o.append(f"v_add_u32_sdwa v{NODEA[bn]}, v{VD}, v{LOFF} dst_sel:DWORD dst_unused:UNUSED_PAD src0_sel:WORD_0 src1_sel:DWORD")
    o.append(f"v_lshrrev_b32 v{VM}, 16, v{VD}")
    for j in range(4):
        o.append(f"ds_read_b128 {vr(X+4*j,4)}, v{XRD+j} offset:{4096*bn}")
    for j in range(4):
        o.append(f"ds_read_b128 {vr(MK+4*j,4)}, v{VM} offset:{MASK+16*j}")
    o.append(f"ds_read_b32 v{AN[0]}, v{NODEA[bn]} offset:{NODE}")
    return o

def flush(blk,b):
    return [f"v_add_f32 v8, v{DEN}, v{DEN+1}", f"v_add_f32 v9, v{NUM}, v{NUM+1}",
            f"ds_add_f32 v{NODEA[b]}, v8 offset:{NODE+256+128*blk}",
            f"ds_add_f32 v{NODEA[b]}, v9 offset:{NODE+512+128*blk}"]

def mix(trans, groups):
    o=[]; ti=0
    for pre,n in groups:
        o+=pre; o+=trans[ti:ti+n]; ti+=n
    assert ti==len(trans), (ti,len(trans))
    return o

def tile_body(a, b, koff):
    bn=b^1
    pk_t,ex,pk_a,rc,acc=valu_block(0)
    ld=issue_loads(a,b)
    a.c(f"---- P0 parity {b}")
    a("s_waitcnt lgkmcnt(2)")
    o=[]
    o+= [ld[0]] + pk_t[:2] + ld[1:6] + pk_t[2:]
    o+= [f"ds_read_b32 v{VD}, v{AD} offset:{DESC+64*(koff+1)}"]
    g1=[mfma(G[1], X+4*j, WB+4*(2*j+1), G[1]) for j in range(4)]
    h1=[mfma(H[1], X+4*j, WV+4*(2*j+1), None if j==0 else H[1]) for j in range(4)]
    vm=ld[6:11]
    o+= mix(ex, [([g1[0]],1),([vm[0]],1),([vm[1]],1),([g1[1]],1),([vm[2]],1),([vm[3]],1),([g1[2]],2),([vm[4]],1),([g1[3]],3),([h1[0]],4)])
    o+= pk_a
    ro=read_operands(bn)
    o+= mix(rc, [([h1[1]],4),([h1[2]],4),([h1[3]],3),(["s_waitcnt vmcnt(5) lgkmcnt(0)"]+ro[:2]+ro[2:4],1),(ro[4:6],1),(ro[6:8],1),(ro[8:10],1),(ro[10:],1)])
    o+= acc + flush(0,b)
    for s in o: a(s)
    pk_t,ex,pk_a,rc,acc=valu_block(1)
    a.c(f"---- P1 parity {b}")
    o=[]
    o+= pk_t
    o+= read_list(koff+3)
    o+= [f"ds_read_b32 v{AN[1]}, v{NODEA[bn]} offset:{NODE+128}"]
    o+= ["s_waitcnt lgkmcnt(5)"]
    g0e=mfma(G[0], EE[bn], WC+0, MK); g1e=mfma(G[1], EE[bn], WC+4, MK)
    g0=[mfma(G[0], X+4*j, WB+4*(2*j), G[0]) for j in range(4)]
    h0=[mfma(H[0], X+4*j, WV+4*(2*j), None if j==0 else H[0]) for j in range(4)]
    o+= mix(ex, [([g0e],3),([g1e],3),([g0[0]],3),([g0[1]],3),([g0[2]],4)])
    o+= pk_a
    o+= mix(rc, [([g0[3]],3),([h0[0]],3),([h0[1]],3),([h0[2]],3),([h0[3]],4)])
    o+= acc + flush(1,b)
    for s in o: a(s)

def gen_k3(name):
    a=Asm()
    a.raw(f".globl {name}\n.p2align 8\n.type {name},@function\n{name}:")
    a("s_cmp_ge_u32 s2, 256")
    a("s_cbranch_scc1 K3_END")
    a("s_load_dwordx4 s[4:7], s[0:1], 0")
    a("s_load_dwordx2 s[8:9], s[0:1], 72")
    a("s_load_dwordx2 s[10:11], s[0:1], 88")
    a("v_lshrrev_b32 v1, 6, v0")
    a("v_and_b32 v13, 63, v0")
    a(f"v_readfirstlane_b32 s{sWAVE}, v1")
    a(f"s_mul_i32 s{sNODE0}, s2, 49")
    a(f"s_movk_i32 s{s128}, 128")
    a(f"s_movk_i32 s{sCC}, {CC}")
    a.c("---- one-time LDS init: NODE region zero, mask table, ovf count")
    a("""
    v_mov_b32 v4, 0
    v_mov_b32 v5, 0
    v_mov_b32 v6, 0
    v_mov_b32 v7, 0
    v_lshlrev_b32 v1, 4, v0
    """)
    for i in range(4):
        a(f"ds_write_b128 v1, v[4:7] offset:{NODE+8192*i}")
    a("v_cmp_gt_u32 vcc, 0x160, v0")
    a("s_and_saveexec_b64 s[38:39], vcc")
    a(f"ds_write_b128 v1, v[4:7] offset:{NODE+32768}")
    a("s_mov_b64 exec, s[38:39]")
    a("""
    v_lshrrev_b32 v8, 4, v0
    v_and_b32 v9, 3, v0
    v_bfe_u32 v10, v0, 2, 2
    v_lshl_add_u32 v9, v9, 2, v10
    v_mov_b32 v11, 0xf149f2ca
    v_cmp_lt_u32 vcc, v9, v8
    v_lshlrev_b32 v10, 2, v0
    s_nop 0
    v_cndmask_b32 v11, v11, v4, vcc
    v_cmp_gt_u32 vcc, 0x110, v0
    s_and_saveexec_b64 s[38:39], vcc
    """)
    a(f"ds_write_b32 v10, v11 offset:{MASK}")
    a("s_mov_b64 exec, s[38:39]")
    a(f"v_mov_b32 v8, {OVF}")
    a("ds_write_b32 v8, v4")
    a("s_waitcnt lgkmcnt(0)")
    a.c("---- SRDs")
    a(f"s_sub_u32 s{sXB}, s4, 3072")
    a(f"s_subb_u32 s{sXB+1}, s5, 0")
    a(f"s_and_b32 s{sXB+1}, s{sXB+1}, 0xffff")
    a(f"s_mov_b32 s{sXB+2}, {N*128+3072}")
    a(f"s_mov_b32 s{sXB+3}, 0x20000")
    a.srd(sEA, 6, 7, E*32)
    a.srd(sWS, 10, 11, WS_W+34*1024)
    a.srd(sOUT, 8, 9, N*128)
    a.srd(sREC, 10, 11, WS_COMPACT)
    a.c("---- batch 0 record offsets: p=(64i+(t>>3)+b)&255 ; off=b*32768+p*128+(t&7)*16")
    a("""
    v_lshrrev_b32 v8, 3, v0
    v_and_b32 v9, 7, v0
    v_lshlrev_b32 v9, 4, v9
    s_lshl_b32 s37, s2, 15
    v_add_u32 v9, s37, v9
    v_add_u32 v10, s2, v8
    """)
    for i in range(4):
        a(f"v_add_u32 v11, {64*i}, v10")
        a("v_and_b32 v11, 255, v11")
        a(f"v_lshl_add_u32 v{164+i}, v11, 7, v9")
    a("s_movk_i32 s37, 3125")
    a("v_mul_u32_u24 v3, s37, v8")
    a(f"s_mov_b32 s{sSTEP}, 200000")
    for i in range(4):
        a(f"buffer_load_dwordx4 {vr(16+4*i,4)}, v{164+i}, {sr(sREC,4)}, 0 offen")
    a.c("---- node GEMM operands: x_dst rows (A), Wa/Wu piece (B)")
    a(f"s_and_b32 s37, s{sWAVE}, 1")
    a(f"s_bfe_u32 s38, s{sWAVE}, 0x10001")
    a(f"s_lshr_b32 s39, s{sWAVE}, 2")
    a("""
    v_and_b32 v8, 31, v13
    v_lshrrev_b32 v9, 5, v13
    s_lshl_b32 s80, s38, 5
    """)
    a(f"s_add_u32 s80, s80, s{sNODE0}")
    a("v_add_u32 v10, s80, v8")
    a("v_lshlrev_b32 v10, 7, v10")
    a("v_lshl_add_u32 v10, v9, 6, v10")
    a("v_add_u32 v10, 3072, v10")
    for j in range(4):
        a(f"buffer_load_dwordx4 {vr(X+4*j,4)}, v10, {sr(sXB,4)}, 0 offen offset:{16*j}")
    a("s_lshl_b32 s80, s37, 3")
    a("s_add_u32 s80, s80, s39")
    a("s_add_u32 s80, s80, 18")
    a("s_lshl_b32 s80, s80, 10")
    a(f"s_add_u32 s80, s80, {WS_W}")
    a("v_lshlrev_b32 v11, 4, v13")
    for j in range(4):
        a(f"buffer_load_dwordx4 {vr(MK+4*j,4)}, v11, {sr(sWS,4)}, s80 offen")
        if j<3: a("s_add_u32 s80, s80, 2048")
    a.c("---- main weights -> AGPRs")
    for p in range(18):
        if p%4==0: a(f"s_mov_b32 s80, {WS_W+p*1024}")
        a(f"buffer_load_dwordx4 {ar(4*p,4)}, v11, {sr(sWS,4)}, s80 offen offset:{(p%4)*1024}")
    a.c("---- x rows for the epilogue")
    a("v_lshrrev_b32 v8, 3, v0")
    a(f"v_add_u32 v8, s{sNODE0}, v8")
    a("v_lshlrev_b32 v8, 7, v8")
    a("v_and_b32 v9, 7, v0")
    a("v_lshl_add_u32 v8, v9, 4, v8")
    a("v_add_u32 v8, 3072, v8")
    a(f"buffer_load_dwordx4 {vr(XEPI,4)}, v8, {sr(sXB,4)}, 0 offen")
    a.c("---- per-lane constants for main loop")
    a("""
    v_and_b32 v8, 31, v13
    v_lshrrev_b32 v9, 5, v13
    v_bfe_u32 v10, v13, 1, 3
    v_lshlrev_b32 v11, 2, v9
    v_xor_b32 v10, v10, v11
    """)
    a(f"s_lshl_b32 s80, s{sWAVE}, 13")
    a(f"s_add_u32 s{sST0}, s80, {STAGE}")
    a(f"s_add_u32 s{sST1}, s{sST0}, 4096")
    a("v_lshlrev_b32 v11, 7, v8")
    a(f"v_add_u32 v11, s{sST0}, v11")
    for j in range(4):
        a(f"v_xor_b32 v12, {j}, v10")
        a(f"v_lshl_add_u32 v{XRD+j}, v12, 4, v11")
    a(f"v_lshlrev_b32 v{KH16}, 4, v9")
    a(f"v_lshlrev_b32 v{LOFF}, 2, v8")
    a("""
    v_lshrrev_b32 v10, 3, v13
    v_and_b32 v11, 7, v13
    v_lshrrev_b32 v12, 1, v10
    v_xor_b32 v11, v11, v12
    v_lshlrev_b32 v11, 4, v11
    """)
    for i in range(4):
        if i%2==1:
            a("v_xor_b32 v12, 64, v11"); a(f"v_add_u32 v{CCH+i}, {3072-1024*i}, v12")
        else:
            a(f"v_add_u32 v{CCH+i}, {3072-1024*i}, v11")
    a(f"v_mov_b32 v{CL2E}, 0xbfb8aa3b")
    a(f"v_mov_b32 v{CONE}, 1.0")
    a(f"v_mov_b32 v{CONE+1}, 1.0")
    a.c("==== batch start: prefill lists / desc / hist")
    a.label("K3_BATCH")
    a("v_lshlrev_b32 v1, 4, v0")
    a("v_mov_b32 v4, -1\nv_mov_b32 v5, -1\nv_mov_b32 v6, -1\nv_mov_b32 v7, -1")
    a("v_add_u32 v8, 32768, v1")
    for i in range(7):
        if i==6:
            a("v_cmp_gt_u32 vcc, 0x12c, v0")
            a("s_and_saveexec_b64 s[38:39], vcc")
        if i<2: a(f"ds_write_b128 v1, v[4:7] offset:{LIST_S+8192*i}")
        else:   a(f"ds_write_b128 v8, v[4:7] offset:{LIST_S+8192*i-32768}")
    a("s_mov_b64 exec, s[38:39]")
    a("v_mov_b32 v4, 0\nv_mov_b32 v5, 0\nv_mov_b32 v6, 0\nv_mov_b32 v7, 0")
    a("v_cmp_gt_u32 vcc, 141, v0")
    a("s_and_saveexec_b64 s[38:39], vcc")
    a(f"ds_write_b128 v1, v[4:7] offset:{DESC}")
    a("s_mov_b64 exec, s[38:39]")
    a("v_cmp_gt_u32 vcc, 16, v0")
    a("s_and_saveexec_b64 s[38:39], vcc")
    a(f"ds_write_b128 v1, v[4:7] offset:{HIST}")
    a("s_mov_b64 exec, s[38:39]")
    a("s_waitcnt lgkmcnt(0)")
    a("s_barrier")
    a.c("==== histogram / rank")
    a.label("K3_WREC")
    a("s_waitcnt vmcnt(27)")
    a.label("K3_HISTPH")
    a("v_mov_b32 v8, 1")
    for r in range(16):
        a(f"v_and_b32 v9, 63, v{16+r}")
        a(f"v_lshl_add_u32 v{32+r}, v9, 2, s{sCC}")
        a(f"v_cmp_ne_u32 s[{sM+2*r}:{sM+2*r+1}], 0, v9")
    for r in range(16):
        a(f"s_mov_b64 exec, s[{sM+2*r}:{sM+2*r+1}]")
        a(f"ds_add_rtn_u32 v{48+r}, v{32+r}, v8 offset:{HIST-CC}")
    a("s_mov_b64 exec, -1")
    a.c("---- node GEMM (first batch only): D -> a[72:87]")
    a(f"s_cmp_eq_u32 s{sSTEP}, 0")
    a("s_cbranch_scc1 K3_NOGEMM")
    a("s_waitcnt vmcnt(19)")
    for j in range(4):
        c = "0" if j==0 else ar(AU,16)
        a(f"v_mfma_f32_32x32x16_bf16 {ar(AU,16)}, {vr(X+4*j,4)}, {vr(MK+4*j,4)}, {c}")
    a(f"s_and_b32 s37, s{sWAVE}, 1")
    a("s_cmp_eq_u32 s37, 1")
    a("s_cbranch_scc1 K3_NOGEMM")
    def node_tile_addr(dst):
        a(f"s_bfe_u32 s38, s{sWAVE}, 0x10001")
        a(f"s_lshr_b32 s39, s{sWAVE}, 2")
        a("s_mul_i32 s80, s38, 24576")
        a("s_lshl_b32 s81, s39, 7")
        a("s_add_u32 s80, s80, s81")
        a("s_add_u32 s80, s80, 768")
        a("v_lshrrev_b32 v9, 5, v13")
        a("v_mul_u32_u24 v9, 3072, v9")
        a(f"v_add_u32 {dst}, v9, v{LOFF}")
        a(f"v_add_u32 {dst}, s80, {dst}")
    node_tile_addr("v10")
    a("s_nop 7")
    for r in range(16):
        a(f"v_accvgpr_read_b32 v{64+r}, a{AU+r}")
    for r in range(16):
        a(f"v_mul_f32 v{64+r}, v{CL2E}, v{64+r}")
    def node_tile_write(src, addr):
        lab=a.newlabel("K3_NW"); end=a.newlabel("K3_NWE")
        for r in range(8):
            a(f"ds_write_b32 {addr}, {src(r)} offset:{NODE+((r&3)+8*(r>>2))*768}")
        a("s_cmp_eq_u32 s38, 1")
        a(f"s_cbranch_scc1 {lab}")
        for r in range(8,16):
            a(f"ds_write_b32 {addr}, {src(r)} offset:{NODE+((r&3)+8*(r>>2))*768}")
        a(f"s_branch {end}")
        a.label(lab)
        a("s_mov_b32 exec_hi, 0")
        a(f"ds_write_b32 {addr}, {src(8)} offset:{NODE+16*768}")
        a("s_mov_b32 exec_hi, -1")
        a.label(end)
    node_tile_write(lambda r: f"v{64+r}", "v10")
    a.label("K3_NOGEMM")
    a("s_waitcnt lgkmcnt(0)")
    a("s_barrier")
    a.c("==== scan (every wave, lane = d1)")
    a("v_lshlrev_b32 v9, 2, v13")
    a(f"ds_read_b32 v64, v9 offset:{HIST}")
    a("v_mul_u32_u24 v66, 768, v13")
    a("s_waitcnt lgkmcnt(0)")
    a.c("markers? (hist[63])")
    a("v_readlane_b32 s80, v64, 63")
    a("v_cmp_gt_u32 vcc, 50, v13")
    a("s_nop 1")
    a("v_cndmask_b32 v64, 0, v64, vcc")
    a("s_cmp_lg_u32 s80, 0")
    a("s_cbranch_scc1 K3_MARKERS")
    a.label("K3_SCAN")
    a("v_add_u32 v65, 15, v64")
    a("v_lshrrev_b32 v65, 4, v65")
    a("s_mov_b32 s81, 0")
    for j in range(8):
        a(f"v_cmp_lt_u32 s[82:83], {j}, v65")
        a(f"v_subrev_u32 v67, {16*j}, v64")
        a("v_min_u32 v67, 16, v67")
        a("v_mbcnt_lo_u32_b32 v68, s82, 0")
        a("v_mbcnt_hi_u32_b32 v68, s83, v68")
        a("v_lshl_add_u32 v67, v67, 22, v66")
        a("v_add_u32 v68, s81, v68")
        a("s_bcnt1_i32_b64 s84, s[82:83]")
        a("v_lshlrev_b32 v69, 2, v68")
        a(f"v_subrev_u32 v{70+j}, {j}, v68")
        a("s_add_u32 s81, s81, s84")
        a(f"v_lshlrev_b32 v{70+j}, 6, v{70+j}")
        a("s_mov_b64 exec, s[82:83]")
        a(f"ds_write_b32 v69, v67 offset:{DESC}")
        a("s_mov_b64 exec, -1")
    a("v_cmp_lt_u32 vcc, 8, v65")
    a("v_mov_b32 v78, 0")
    a("s_cbranch_vccnz K3_TAIL")
    a.label("K3_TAILDONE")
    a("v_lshlrev_b32 v9, 6, v13")
    a(f"v_add_u32 v9, {TAB}, v9")
    a("ds_write_b128 v9, v[70:73]")
    a("ds_write_b128 v9, v[74:77] offset:16")
    a("ds_write_b32 v9, v78 offset:32")
    a.c("tiles for this wave")
    a("s_add_u32 s81, s81, 1")
    a("s_lshr_b32 s81, s81, 1")
    a("s_add_u32 s81, s81, 7")
    a(f"s_sub_u32 s81, s81, s{sWAVE}")
    a(f"s_lshr_b32 s{sCNT}, s81, 3")
    a.c("==== scatter")
    for r in range(16):
        a(f"v_lshrrev_b32 v9, 2, v{48+r}")
        a("v_and_b32 v9, -4, v9")
        a("v_min_u32 v9, 32, v9")
        a(f"v_lshl_add_u32 v9, v{32+r}, 4, v9")
        a(f"ds_read_b32 v{64+r}, v9")
    for r in range(16):
        i=r//4
        a(f"v_bfe_u32 v{32+r}, v{16+r}, 6, 12")
        if i==0: a(f"v_add_u32 v{32+r}, v{32+r}, v3")
        else:
            if r%4==0: a(f"s_mul_i32 s80, s{sSTEP}, {i}")
            a(f"v_add3_u32 v{32+r}, v{32+r}, v3, s80")
        a(f"v_lshrrev_b32 v{16+r}, 18, v{16+r}")
    a("s_waitcnt lgkmcnt(0)")
    for r in range(16):
        a(f"v_lshl_add_u32 v{64+r}, v{48+r}, 2, v{64+r}")
        a(f"v_lshrrev_b32 v{48+r}, 1, v{64+r}")
    for r in range(16):
        a(f"s_mov_b64 exec, s[{sM+2*r}:{sM+2*r+1}]")
        a(f"ds_write_b32 v{64+r}, v{32+r} offset:{LIST_E}")
        a(f"ds_write_b16 v{48+r}, v{16+r} offset:{LIST_S}")
    a("s_mov_b64 exec, -1")
    a.c("list address regs")
    a("""
    v_lshrrev_b32 v8, 3, v13
    v_lshlrev_b32 v8, 3, v8
    """)
    a(f"s_lshl_b32 s80, s{sWAVE}, 6")
    a(f"v_add_u32 v{AS}, s80, v8")
    a("""
    v_and_b32 v8, 7, v13
    v_bfe_u32 v9, v13, 3, 2
    v_lshl_add_u32 v8, v8, 2, v9
    v_lshlrev_b32 v8, 2, v8
    """)
    a(f"s_lshl_b32 s80, s{sWAVE}, 7")
    a(f"v_add_u32 v{AE}, s80, v8")
    a("v_lshrrev_b32 v8, 5, v13")
    a("v_lshlrev_b32 v8, 2, v8")
    a(f"s_lshl_b32 s80, s{sWAVE}, 3")
    a(f"v_add_u32 v{AD}, s80, v8")
    a(f"v_mov_b32 v{CL2E+1}, v{CL2E}") if False else None
    a("v_mov_b32 v15, 1.0")
    a("s_waitcnt vmcnt(0) lgkmcnt(0)")
    a("s_barrier")
    a.c("==== main loop")
    a(f"s_cmp_eq_u32 s{sCNT}, 0")
    a("s_cbranch_scc1 K3_BATCHEND")
    a(f"v_mov_b32 v{CL2E+1}, v{CL2E}")
    a.c("pipeline prologue")
    for s in read_list(0): a(s)
    a(f"ds_read_b32 v{VD}, v{AD} offset:{DESC}")
    a("s_waitcnt lgkmcnt(0)")
    ld=issue_loads(a,0)
    for s in ld[:6]: a(s)
    for s in ld[6:]: a(s)
    for s in read_list(1): a(s)
    a("s_waitcnt lgkmcnt(0)")
    ld=issue_loads(a,1)
    a(ld[0]); a("s_nop 0")
    for s in ld[1:]: a(s)
    for s in read_list(2): a(s)
    a("s_waitcnt vmcnt(5)")
    for s in read_operands(0): a(s)
    a(f"ds_read_b32 v{AN[1]}, v{NODEA[0]} offset:{NODE+128}")
    a("s_waitcnt lgkmcnt(0)")
    a(mfma(G[0], EE[0], WC+0, MK)); a(mfma(G[1], EE[0], WC+4, MK))
    for j in range(4): a(mfma(G[0], X+4*j, WB+4*(2*j), G[0]))
    for j in range(4): a(mfma(H[0], X+4*j, WV+4*(2*j), None if j==0 else H[0]))
    a("s_nop 7"); a("s_nop 7")
    a.c("dummy lgkm ordering: loop head expects <=2 younger LDS ops")
    a(".p2align 3")
    a.label("K3_LOOP")
    tile_body(a,0,0)
    a(f"s_sub_u32 s{sCNT}, s{sCNT}, 1")
    a(f"s_cmp_eq_u32 s{sCNT}, 0")
    a("s_cbranch_scc1 K3_BATCHEND")
    tile_body(a,1,1)
    a(f"v_add_u32 v{AS}, 1024, v{AS}")
    a(f"v_add_u32 v{AE}, 2048, v{AE}")
    a(f"v_add_u32 v{AD}, 128, v{AD}")
    a(f"s_sub_u32 s{sCNT}, s{sCNT}, 1")
    a(f"s_cmp_lg_u32 s{sCNT}, 0")
    a("s_cbranch_scc1 K3_LOOP")
    a.label("K3_BATCHEND")
    a("s_waitcnt vmcnt(0) lgkmcnt(0)")
    a("s_barrier")
    a.c("==== more batches? (overflow descriptors)")
    a(f"v_mov_b32 v8, {OVF}")
    a("ds_read_b32 v9, v8")
    a("s_waitcnt lgkmcnt(0)")
    a("v_readfirstlane_b32 s80, v9")
    a("s_nop 3")
    a("s_cmp_eq_u32 s80, 0")
    a("s_cbranch_scc1 K3_EPI")
    a.c("pop entry s80-1 ; all waves read it, then barrier, then one lane decrements")
    a("s_lshl_b32 s81, s80, 2")
    a(f"s_add_u32 s81, s81, {OVF+12}")
    a("v_mov_b32 v8, s81")
    a("ds_read_b32 v9, v8")
    a("s_waitcnt lgkmcnt(0)")
    a("v_readfirstlane_b32 s82, v9")
    a("s_barrier")
    a("s_sub_u32 s80, s80, 1")
    a(f"v_mov_b32 v8, {OVF}")
    a("v_mov_b32 v9, s80")
    a("ds_write_b32 v8, v9")
    a("s_lshr_b32 s83, s82, 24")
    a("s_bfe_u32 s84, s82, 0xc000c")
    a("s_and_b32 s85, s82, 0xfff")
    a("s_mul_i32 s86, s83, 12500")
    a(f"s_add_u32 s86, s86, {WS_COMPACT}")
    a("s_lshl_b32 s84, s84, 2")
    a("s_add_u32 s86, s86, s84")
    a("s_lshl_b32 s85, s85, 2")
    a(f"s_add_u32 s{sREC+2}, s86, s85")
    a("s_mul_i32 s83, s83, 3125")
    a("v_mov_b32 v3, s83")
    a(f"s_mov_b32 s{sSTEP}, 0")
    a("v_lshlrev_b32 v8, 4, v0")
    a("v_add_u32 v8, s86, v8")
    for i in range(4):
        a(f"buffer_load_dwordx4 {vr(16+4*i,4)}, v8, {sr(sREC,4)}, 0 offen")
        if i<3: a("v_add_u32 v8, 8192, v8")
    a("v_and_b32 v13, 63, v0")
    a("s_waitcnt vmcnt(0)")
    a("s_branch K3_BATCH")
    a.label("K3_MARKERS")
    a("v_lshrrev_b32 v8, 3, v0")
    a("v_mov_b32 v10, 1")
    a(f"v_mov_b32 v11, {OVF}")
    a(f"s_add_u32 s84, s{sCC}, 252")
    for r in range(16):
        lab=a.newlabel("K3_MK")
        a(f"v_cmp_eq_u32 vcc, s84, v{32+r}")
        a(f"s_and_b64 vcc, vcc, s[{sM+2*r}:{sM+2*r+1}]")
        a(f"s_cbranch_vccz {lab}")
        a(f"s_andn2_b64 s[{sM+2*r}:{sM+2*r+1}], s[{sM+2*r}:{sM+2*r+1}], vcc")
        a("s_mov_b64 exec, vcc")
        a("ds_add_rtn_u32 v9, v11, v10")
        a(f"v_add_u32 v12, {64*(r//4)}, v8")
        a("v_lshlrev_b32 v12, 24, v12")
        a(f"v_bfe_u32 v79, v{16+r}, 6, 12")
        a("v_lshl_add_u32 v12, v79, 12, v12")
        a(f"v_lshrrev_b32 v79, 18, v{16+r}")
        a("v_add_u32 v12, v79, v12")
        a("s_waitcnt lgkmcnt(0)")
        a("v_lshlrev_b32 v9, 2, v9")
        a(f"ds_write_b32 v9, v12 offset:{OVF+16}")
        a("s_mov_b64 exec, -1")
        a.label(lab)
    a("s_branch K3_SCAN")
    a.label("K3_TAIL")
    a("v_subrev_u32 v79, 8, v65")
    a("v_max_i32 v79, 0, v79")
    a("v_mov_b32 v80, v79")
    for sh in (1,2,4,8):
        a("s_nop 1")
        a(f"v_add_u32_dpp v80, v80, v80 row_shr:{sh} row_mask:0xf bank_mask:0xf bound_ctrl:0")
    a("s_nop 1")
    a("v_add_u32_dpp v80, v80, v80 row_bcast:15 row_mask:0xa bank_mask:0xf")
    a("s_nop 1")
    a("v_add_u32_dpp v80, v80, v80 row_bcast:31 row_mask:0xc bank_mask:0xf")
    a("s_nop 1")
    a("v_readlane_b32 s84, v80, 63")
    a("v_sub_u32 v80, v80, v79")
    a("v_add_u32 v80, s81, v80")
    a("v_subrev_u32 v78, 8, v80")
    a("v_lshlrev_b32 v78, 6, v78")
    a("s_add_u32 s81, s81, s84")
    a("s_mov_b32 s85, 8")
    a.label("K3_TLOOP")
    a("v_cmp_lt_u32 vcc, s85, v65")
    a("s_cbranch_vccz K3_TAILDONE")
    a("s_lshl_b32 s86, s85, 4")
    a("v_subrev_u32 v67, s86, v64")
    a("v_min_u32 v67, 16, v67")
    a("v_lshl_add_u32 v67, v67, 22, v66")
    a("s_sub_u32 s86, s85, 8")
    a("v_add_u32 v69, s86, v80")
    a("v_lshlrev_b32 v69, 2, v69")
    a("s_mov_b64 exec, vcc")
    a(f"ds_write_b32 v69, v67 offset:{DESC}")
    a("s_mov_b64 exec, -1")
    a("s_add_u32 s85, s85, 1")
    a("s_branch K3_TLOOP")
    a.label("K3_EPI")
    a("v_and_b32 v13, 63, v0")
    a(f"s_and_b32 s37, s{sWAVE}, 1")
    a("s_cmp_eq_u32 s37, 0")
    a("s_cbranch_scc1 K3_EPI2")
    node_tile_addr("v10")
    node_tile_write(lambda r: f"a{AU+r}", "v10")
    a.label("K3_EPI2")
    a("s_waitcnt lgkmcnt(0)")
    a("s_barrier")
    a("v_cmp_gt_u32 vcc, 0x188, v0")
    a("s_and_saveexec_b64 s[38:39], vcc")
    a("s_cbranch_execz K3_END")
    a("v_lshrrev_b32 v8, 3, v0")
    a("v_and_b32 v9, 7, v0")
    a("v_mul_u32_u24 v10, 768, v8")
    a("v_lshl_add_u32 v10, v9, 5, v10")
    for q,off in enumerate((0,256,512)):
        a(f"ds_read_b128 {vr(16+8*q,4)}, v10 offset:{NODE+768+off}")
        a(f"ds_read_b128 {vr(20+8*q,4)}, v10 offset:{NODE+768+off+16}")
    a(f"v_add_u32 v8, s{sNODE0}, v8")
    a("v_lshlrev_b32 v8, 7, v8")
    a("v_lshl_add_u32 v8, v9, 4, v8")
    a("s_mov_b32 s80, 0x358637bd")
    a("s_waitcnt lgkmcnt(0)")
    for i in range(8): a(f"v_add_f32 v{24+i}, s80, v{24+i}")
    for i in range(8): a(f"v_rcp_f32 v{24+i}, v{24+i}")
    a("s_nop 0")
    for i in range(8): a(f"v_fma_f32 v{16+i}, v{32+i}, v{24+i}, v{16+i}")
    for i in range(8): a(f"v_max_f32 v{16+i}, 0, v{16+i}")
    for i in range(4):
        a(f"v_lshlrev_b32 v40, 16, v{XEPI+i}")
        a(f"v_and_b32 v41, 0xffff0000, v{XEPI+i}")
        a(f"v_add_f32 v{16+2*i}, v40, v{16+2*i}")
        a(f"v_add_f32 v{17+2*i}, v41, v{17+2*i}")
    for i in range(4):
        a(f"v_cvt_pk_bf16_f32 v{44+i}, v{16+2*i}, v{17+2*i}")
    a(f"buffer_store_dwordx4 v[44:47], v8, {sr(sOUT,4)}, 0 offen")
    a.label("K3_END")
    a("s_endpgm")
    return a.text(), kdesc(name, 256, 96, 168)
```

```python
import sys
from k1 import gen_k1, K1_LDS
from k3 import gen_k3, K3_LDS
KN="standalone__edge_featured_mpnn_gatedgcn__graph"
hdr=open("cdna_kernels/"+KN+".s.ref").read().split("; Override launch geometry")[0]
k1,kd1=gen_k1("bucket_kernel")
k3,kd3=gen_k3(KN+"_kernel")
s=hdr
s+=f"; @launch kernel=bucket_kernel grid=(257,1,1) block=(1024,1,1) lds={K1_LDS}\n"
s+=f"; @launch kernel={KN}_kernel grid=(256,1,1) block=(512,1,1) lds={K3_LDS}\n"
s+='.amdgcn_target "amdgcn-amd-amdhsa--gfx950"\n.text\n'
s+=k1+k3
s+='.section .rodata,"a"\n'+kd1+kd3
out=sys.argv[1] if len(sys.argv)>1 else "cdna_kernels/"+KN+".s"
open(out,"w").write(s)
```

```python
from asmlib import *
from k1 import WS_SLOTS, WS_COMPACT, WS_W
N=12500; E=800000
NREC=1280
NTILE=154
OVF=0; MASK=1056; DESC=2144; LIST_S=3392; LIST_E=LIST_S+NTILE*64; HIST=LIST_E+NTILE*128; NODE=HIST+256
STAGE=(NODE+50*NREC+127)//128*128; K3_LDS=STAGE+65536
TAB=STAGE; CC=TAB//16
DESCN=(LIST_S-DESC)//16
LISTN=NTILE*192//16
assert DESC+(NTILE+1)*8<=LIST_S and K3_LDS<=163840, K3_LDS
assert LIST_E+1024*4<65536 and 0<=HIST-CC<65536
MAXG=2*NTILE-1
G=[16,48]; H=[32,64]; T=80; MK=96; X=112; EE=[128,132]
XRD=136; CCH=140; KH16=144; LOFF=145; AS=146; AE=147; AD=148; VM=149
SRC4=150; EID=152; VD=153; NODEA=[154,155]; AN=[156,158]; NODEB=[157,159]; XEPI=160; RECO=164
CL2E=2; CONE=14; DEN=4; NUM=6; LOF4=1
WB=0; WV=32; WC=64; AU=72
sXB=12; sEA=16; sWS=20; sOUT=24; sWAVE=28; sNODE0=29; sSTEP=30; sCNT=31; sMODE=32; sST0=33; sST1=34; s128=35; sCC=36
sREC=40; sM=48
STAMP=False
WS_STAMP=0xD00000

def mfma(d, a_, b_, c):
    cs = "0" if c is None else vr(c,16)
    return f"v_mfma_f32_32x32x16_bf16 {vr(d,16)}, {vr(a_,4)}, {ar(b_,4)}, {cs}"

def valu_block(blk):
    g=G[blk]; h=H[blk]; an=AN[blk]
    pk_t=[f"v_pk_fma_f32 {vr(T+2*i,2)}, {vr(g+2*i,2)}, {vr(CL2E,2)}, {vr(an,2)} op_sel_hi:[1,1,0]" for i in range(8)]
    ex=[f"v_exp_f32 v{T+i}, v{T+i}" for i in range(16)]
    pk_a=[f"v_pk_add_f32 {vr(T+2*i,2)}, {vr(T+2*i,2)}, {vr(CONE,2)}" for i in range(8)]
    rc=[f"v_rcp_f32 v{T+i}, v{T+i}" for i in range(16)]
    acc=[f"v_pk_add_f32 {vr(DEN,2)}, {vr(T,2)}, {vr(T+2,2)}",
         f"v_pk_mul_f32 {vr(NUM,2)}, {vr(T,2)}, {vr(h,2)}",
         f"v_pk_fma_f32 {vr(NUM,2)}, {vr(T+2,2)}, {vr(h+2,2)}, {vr(NUM,2)}"]
    for i in range(2,8):
        acc.append(f"v_pk_add_f32 {vr(DEN,2)}, {vr(T+2*i,2)}, {vr(DEN,2)}")
        acc.append(f"v_pk_fma_f32 {vr(NUM,2)}, {vr(T+2*i,2)}, {vr(h+2*i,2)}, {vr(NUM,2)}")
    return pk_t,ex,pk_a,rc,acc

def issue_loads(b):
    o=[]
    o.append(f"s_mov_b32 m0, s{sST0 if b==0 else sST1}")
    o.append(f"v_mad_u32_u16 v8, v{SRC4}, s{s128}, v{CCH}")
    o.append(f"v_mad_u32_u16 v9, v{SRC4}, s{s128}, v{CCH+1} op_sel:[1,0,0,0]")
    o.append(f"v_mad_u32_u16 v10, v{SRC4+1}, s{s128}, v{CCH+2}")
    o.append(f"v_mad_u32_u16 v11, v{SRC4+1}, s{s128}, v{CCH+3} op_sel:[1,0,0,0]")
    o.append(f"v_lshl_add_u32 v12, v{EID}, 5, v{KH16}")
    for i in range(4):
        o.append(f"buffer_load_dwordx4 v{8+i}, {sr(sXB,4)}, 0 offen offset:{1024*i} lds")
    o.append(f"buffer_load_dwordx4 {vr(EE[b],4)}, v12, {sr(sEA,4)}, 0 offen")
    return o

def read_list(koff):
    return [f"ds_read_b64 {vr(SRC4,2)}, v{AS} offset:{LIST_S+512*koff}",
            f"ds_read_b32 v{EID}, v{AE} offset:{LIST_E+1024*koff}"]

def read_operands(bn):
    o=[]
    o.append(f"v_add_u32_sdwa v{NODEA[bn]}, v{VD}, v{LOFF} dst_sel:DWORD dst_unused:UNUSED_PAD src0_sel:WORD_0 src1_sel:DWORD")
    o.append(f"v_lshrrev_b32 v{VM}, 16, v{VD}")
    o.append(f"v_add_u32 v{NODEB[bn]}, v{NODEA[bn]}, v{LOF4}")
    for j in range(4):
        o.append(f"ds_read_b128 {vr(X+4*j,4)}, v{XRD+j} offset:{4096*bn}")
    for j in range(4):
        o.append(f"ds_read_b128 {vr(MK+4*j,4)}, v{VM} offset:{MASK+16*j}")
    o.append(f"ds_read_b32 v{AN[0]}, v{NODEA[bn]}")
    return o

def flush(blk,b):
    return [f"v_add_f32 v8, v{DEN}, v{DEN+1}", f"v_add_f32 v9, v{NUM}, v{NUM+1}",
            f"v_cvt_f64_f32 v[10:11], v8",
            f"v_cvt_f64_f32 v[8:9], v9",
            f"ds_add_f64 v{NODEB[b]}, v[10:11] offset:{256+256*blk}",
            f"ds_add_f64 v{NODEB[b]}, v[8:9] offset:{768+256*blk}"]

def mix(trans, groups):
    o=[]; ti=0
    for pre,n in groups:
        o+=pre; o+=trans[ti:ti+n]; ti+=n
    assert ti==len(trans), (ti,len(trans))
    return o

def tile_body(a, b, koff):
    bn=b^1
    pk_t,ex,pk_a,rc,acc=valu_block(0)
    ld=issue_loads(b)
    a.c(f"---- P0 parity {b}")
    a("s_waitcnt lgkmcnt(2)")
    o=[]
    o+= [ld[0]] + pk_t[:2] + ld[1:6] + pk_t[2:]
    o+= [f"ds_read_b32 v{VD}, v{AD} offset:{DESC+64*(koff+1)}"]
    g1=[mfma(G[1], X+4*j, WB+4*(2*j+1), G[1]) for j in range(4)]
    h1=[mfma(H[1], X+4*j, WV+4*(2*j+1), None if j==0 else H[1]) for j in range(4)]
    vm=ld[6:11]
    o+= mix(ex, [([g1[0]],1),([vm[0]],1),([vm[1]],1),([g1[1]],1),([vm[2]],1),([vm[3]],1),([g1[2]],2),([vm[4]],1),([g1[3]],3),([h1[0]],4)])
    o+= pk_a
    ro=read_operands(bn)
    o+= mix(rc, [([h1[1]],4),([h1[2]],4),([h1[3]],3),(["s_waitcnt vmcnt(5) lgkmcnt(0)"]+ro[:3]+ro[3:5],1),(ro[5:7],1),(ro[7:9],1),(ro[9:11],1),(ro[11:],1)])
    o+= acc + flush(0,b)
    for s in o: a(s)
    pk_t,ex,pk_a,rc,acc=valu_block(1)
    a.c(f"---- P1 parity {b}")
    o=[]
    o+= pk_t
    o+= read_list(koff+3)
    o+= [f"ds_read_b32 v{AN[1]}, v{NODEA[bn]} offset:128"]
    o+= ["s_waitcnt lgkmcnt(5)"]
    g0e=mfma(G[0], EE[bn], WC+0, MK); g1e=mfma(G[1], EE[bn], WC+4, MK)
    g0=[mfma(G[0], X+4*j, WB+4*(2*j), G[0]) for j in range(4)]
    h0=[mfma(H[0], X+4*j, WV+4*(2*j), None if j==0 else H[0]) for j in range(4)]
    o+= mix(ex, [([g0e],3),([g1e],3),([g0[0]],3),([g0[1]],3),([g0[2]],4)])
    o+= pk_a
    o+= mix(rc, [([g0[3]],3),([h0[0]],3),([h0[1]],3),([h0[2]],3),([h0[3]],4)])
    o+= acc + flush(1,b)
    for s in o: a(s)

def gen_k3(name):
    a=Asm()
    def stamp(i):
        if STAMP:
            a(f"s_memtime s[{88+2*i}:{89+2*i}]")
            a("s_waitcnt lgkmcnt(0)")
    a.raw(f".globl {name}\n.p2align 8\n.type {name},@function\n{name}:")
    a("s_cmp_ge_u32 s2, 256")
    a("s_cbranch_scc1 K3_END")
    stamp(0)
    a("s_load_dwordx2 s[10:11], s[0:1], 88")
    a("s_load_dwordx4 s[4:7], s[0:1], 0")
    a("s_load_dwordx2 s[8:9], s[0:1], 72")
    a("v_lshrrev_b32 v1, 6, v0")
    a("v_and_b32 v13, 63, v0")
    a(f"v_readfirstlane_b32 s{sWAVE}, v1")
    a(f"s_mul_i32 s{sNODE0}, s2, 49")
    a(f"s_movk_i32 s{s128}, 128")
    a(f"s_movk_i32 s{sCC}, {CC}")
    a(f"s_mov_b32 s{sMODE}, 0")
    a.c("---- batch 0 record offsets: p=(64i+(t>>3)+b)&255 ; off=b*32768+p*128+(t&7)*16")
    a("""
    v_lshrrev_b32 v8, 3, v0
    v_and_b32 v9, 7, v0
    v_lshlrev_b32 v9, 4, v9
    s_lshl_b32 s37, s2, 15
    v_add_u32 v9, s37, v9
    v_add_u32 v10, s2, v8
    """)
    for i in range(4):
        a(f"v_add_u32 v11, {64*i}, v10")
        a("v_and_b32 v11, 255, v11")
        a(f"v_lshl_add_u32 v{RECO+i}, v11, 7, v9")
    a("s_movk_i32 s37, 3125")
    a("v_mul_u32_u24 v3, s37, v8")
    a(f"s_mov_b32 s{sSTEP}, 200000")
    a.c("node GEMM operand addresses")
    a(f"s_and_b32 s37, s{sWAVE}, 1")
    a(f"s_bfe_u32 s38, s{sWAVE}, 0x10001")
    a(f"s_lshr_b32 s39, s{sWAVE}, 2")
    a("""
    v_and_b32 v8, 31, v13
    v_lshrrev_b32 v9, 5, v13
    s_lshl_b32 s80, s38, 5
    """)
    a(f"s_add_u32 s80, s80, s{sNODE0}")
    a("v_add_u32 v10, s80, v8")
    a("v_lshlrev_b32 v10, 7, v10")
    a("v_lshl_add_u32 v10, v9, 6, v10")
    a("v_add_u32 v10, 3072, v10")
    a("s_lshl_b32 s80, s37, 3")
    a("s_add_u32 s80, s80, s39")
    a("s_add_u32 s80, s80, 18")
    a("s_lshl_b32 s80, s80, 10")
    a(f"s_add_u32 s80, s80, {WS_W}")
    a("v_lshlrev_b32 v11, 4, v13")
    a("v_lshrrev_b32 v8, 3, v0")
    a(f"v_add_u32 v8, s{sNODE0}, v8")
    a("v_lshlrev_b32 v8, 7, v8")
    a("v_and_b32 v9, 7, v0")
    a("v_lshl_add_u32 v8, v9, 4, v8")
    a("v_add_u32 v12, 3072, v8")
    a("s_waitcnt lgkmcnt(0)")
    a.c("---- SRDs + all prologue loads")
    a.srd(sREC, 10, 11, WS_COMPACT)
    for i in range(4):
        a(f"buffer_load_dwordx4 {vr(16+4*i,4)}, v{RECO+i}, {sr(sREC,4)}, 0 offen")
    a(f"s_sub_u32 s{sXB}, s4, 3072")
    a(f"s_subb_u32 s{sXB+1}, s5, 0")
    a(f"s_and_b32 s{sXB+1}, s{sXB+1}, 0xffff")
    a(f"s_mov_b32 s{sXB+2}, {N*128+3072}")
    a(f"s_mov_b32 s{sXB+3}, 0x20000")
    a.srd(sWS, 10, 11, WS_W+34*1024)
    for j in range(4):
        a(f"buffer_load_dwordx4 {vr(X+4*j,4)}, v10, {sr(sXB,4)}, 0 offen offset:{16*j}")
    for j in range(4):
        a(f"buffer_load_dwordx4 {vr(MK+4*j,4)}, v11, {sr(sWS,4)}, s80 offen")
        if j<3: a("s_add_u32 s80, s80, 2048")
    for p in range(18):
        if p%4==0: a(f"s_mov_b32 s80, {WS_W+p*1024}")
        a(f"buffer_load_dwordx4 {ar(4*p,4)}, v11, {sr(sWS,4)}, s80 offen offset:{(p%4)*1024}")
    a(f"buffer_load_dwordx4 {vr(XEPI,4)}, v12, {sr(sXB,4)}, 0 offen")
    a.srd(sEA, 6, 7, E*32)
    a.srd(sOUT, 8, 9, N*128)
    a.c("---- one-time LDS init: NODE region zero, mask table, ovf count")
    a("""
    v_mov_b32 v4, 0
    v_mov_b32 v5, 0
    v_mov_b32 v6, 0
    v_mov_b32 v7, 0
    v_lshlrev_b32 v8, 4, v0
    """)
    a(f"v_add_u32 v8, {NODE}, v8")
    nn=50*NREC//16
    for i in range((nn+511)//512):
        last=(i+1)*512>nn
        if last:
            a(f"v_cmp_gt_u32 vcc, {nn-i*512}, v0")
            a("s_and_saveexec_b64 s[38:39], vcc")
        a(f"ds_write_b128 v8, v[4:7] offset:{8192*i}")
        if last: a("s_mov_b64 exec, s[38:39]")
    a("""
    v_lshrrev_b32 v8, 4, v0
    v_and_b32 v9, 3, v0
    v_bfe_u32 v10, v0, 2, 2
    v_lshl_add_u32 v9, v9, 2, v10
    v_mov_b32 v11, 0xf149f2ca
    v_cmp_lt_u32 vcc, v9, v8
    v_lshlrev_b32 v10, 2, v0
    s_nop 0
    v_cndmask_b32 v11, v11, v4, vcc
    v_cmp_gt_u32 vcc, 0x110, v0
    s_and_saveexec_b64 s[38:39], vcc
    """)
    a(f"ds_write_b32 v10, v11 offset:{MASK}")
    a("s_mov_b64 exec, s[38:39]")
    a(f"v_mov_b32 v8, {OVF}")
    a("ds_write_b32 v8, v4")
    a.c("---- per-lane constants for main loop")
    a("""
    v_and_b32 v8, 31, v13
    v_lshrrev_b32 v9, 5, v13
    v_bfe_u32 v10, v13, 1, 3
    v_lshlrev_b32 v11, 2, v9
    v_xor_b32 v10, v10, v11
    """)
    a(f"s_lshl_b32 s80, s{sWAVE}, 13")
    a(f"s_add_u32 s{sST0}, s80, {STAGE}")
    a(f"s_add_u32 s{sST1}, s{sST0}, 4096")
    a("v_lshlrev_b32 v11, 7, v8")
    a(f"v_add_u32 v11, s{sST0}, v11")
    for j in range(4):
        a(f"v_xor_b32 v12, {j}, v10")
        a(f"v_lshl_add_u32 v{XRD+j}, v12, 4, v11")
    a(f"v_lshlrev_b32 v{KH16}, 4, v9")
    a(f"v_lshlrev_b32 v{LOF4}, 2, v8")
    a(f"v_add_u32 v{LOFF}, {NODE}, v{LOF4}")
    a("""
    v_lshrrev_b32 v10, 3, v13
    v_and_b32 v11, 7, v13
    v_lshrrev_b32 v12, 1, v10
    v_xor_b32 v11, v11, v12
    v_lshlrev_b32 v11, 4, v11
    """)
    for i in range(4):
        if i%2==1:
            a("v_xor_b32 v12, 64, v11"); a(f"v_add_u32 v{CCH+i}, {3072-1024*i}, v12")
        else:
            a(f"v_add_u32 v{CCH+i}, {3072-1024*i}, v11")
    a(f"v_mov_b32 v{CL2E}, 0xbfb8aa3b")
    a(f"v_mov_b32 v{CONE}, 1.0")
    a(f"v_mov_b32 v{CONE+1}, 1.0")
    a.c("==== batch start: prefill lists / desc / hist")
    a.label("K3_BATCH")
    a("v_lshlrev_b32 v8, 4, v0")
    a("v_mov_b32 v4, -1\nv_mov_b32 v5, -1\nv_mov_b32 v6, -1\nv_mov_b32 v7, -1")
    for i in range((LISTN+511)//512):
        last=(i+1)*512>LISTN
        if last:
            a(f"v_cmp_gt_u32 vcc, {LISTN-i*512}, v0")
            a("s_and_saveexec_b64 s[38:39], vcc")
        a(f"ds_write_b128 v8, v[4:7] offset:{LIST_S+8192*i}")
        if last: a("s_mov_b64 exec, s[38:39]")
    a("v_mov_b32 v4, 0\nv_mov_b32 v5, 0\nv_mov_b32 v6, 0\nv_mov_b32 v7, 0")
    a(f"v_cmp_gt_u32 vcc, {DESCN}, v0")
    a("s_and_saveexec_b64 s[38:39], vcc")
    a(f"ds_write_b128 v8, v[4:7] offset:{DESC}")
    a("s_mov_b64 exec, s[38:39]")
    a("v_cmp_gt_u32 vcc, 16, v0")
    a("s_and_saveexec_b64 s[38:39], vcc")
    a(f"ds_write_b128 v8, v[4:7] offset:{HIST}")
    a("s_mov_b64 exec, s[38:39]")
    a("s_waitcnt lgkmcnt(0)")
    a("s_barrier")
    a.c("==== histogram / rank")
    a("s_waitcnt vmcnt(27)")
    stamp(1)
    a("v_mov_b32 v8, 1")
    for r in range(16):
        a(f"v_and_b32 v9, 63, v{16+r}")
        a(f"v_lshl_add_u32 v{32+r}, v9, 2, s{sCC}")
        a(f"v_cmp_ne_u32 s[{sM+2*r}:{sM+2*r+1}], 0, v9")
    for r in range(16):
        a(f"s_mov_b64 exec, s[{sM+2*r}:{sM+2*r+1}]")
        a(f"ds_add_rtn_u32 v{48+r}, v{32+r}, v8 offset:{HIST-CC}")
    a("s_mov_b64 exec, -1")
    a.c("---- node GEMM (very first pass only): D -> a[72:87]")
    a(f"s_cmp_lg_u32 s{sMODE}, 0")
    a("s_cbranch_scc1 K3_NOGEMM")
    a("s_waitcnt vmcnt(19)")
    for j in range(4):
        c = "0" if j==0 else ar(AU,16)
        a(f"v_mfma_f32_32x32x16_bf16 {ar(AU,16)}, {vr(X+4*j,4)}, {vr(MK+4*j,4)}, {c}")
    a(f"s_and_b32 s37, s{sWAVE}, 1")
    a("s_cmp_eq_u32 s37, 1")
    a("s_cbranch_scc1 K3_NOGEMM")
    def node_tile_addr(dst):
        a(f"s_bfe_u32 s38, s{sWAVE}, 0x10001")
        a(f"s_lshr_b32 s39, s{sWAVE}, 2")
        a(f"s_mul_i32 s80, s38, {32*NREC}")
        a("s_lshl_b32 s81, s39, 7")
        a("s_add_u32 s80, s80, s81")
        a(f"s_add_u32 s80, s80, {NREC}")
        a("v_lshrrev_b32 v9, 5, v13")
        a(f"v_mul_u32_u24 v9, {4*NREC}, v9")
        a(f"v_add_u32 {dst}, v9, v{LOFF}")
        a(f"v_add_u32 {dst}, s80, {dst}")
    node_tile_addr("v10")
    a("s_nop 7")
    for r in range(16):
        a(f"v_accvgpr_read_b32 v{64+r}, a{AU+r}")
    for r in range(16):
        a(f"v_mul_f32 v{64+r}, v{CL2E}, v{64+r}")
    def node_tile_write(src, addr):
        lab=a.newlabel("K3_NW"); end=a.newlabel("K3_NWE")
        for r in range(8):
            a(f"ds_write_b32 {addr}, {src(r)} offset:{((r&3)+8*(r>>2))*NREC}")
        a("s_cmp_eq_u32 s38, 1")
        a(f"s_cbranch_scc1 {lab}")
        for r in range(8,16):
            a(f"ds_write_b32 {addr}, {src(r)} offset:{((r&3)+8*(r>>2))*NREC}")
        a(f"s_branch {end}")
        a.label(lab)
        a("s_mov_b32 exec_hi, 0")
        a(f"ds_write_b32 {addr}, {src(8)} offset:{16*NREC}")
        a("s_mov_b32 exec_hi, -1")
        a.label(end)
    node_tile_write(lambda r: f"v{64+r}", "v10")
    a.label("K3_NOGEMM")
    a("s_waitcnt lgkmcnt(0)")
    a("s_barrier")
    stamp(2)
    a.c("==== scan (every wave, lane = d1)")
    a("v_lshlrev_b32 v9, 2, v13")
    a(f"ds_read_b32 v64, v9 offset:{HIST}")
    a(f"v_mul_u32_u24 v66, {NREC}, v13")
    a("s_waitcnt lgkmcnt(0)")
    a("v_readlane_b32 s87, v64, 63")
    a("v_cmp_gt_u32 vcc, 50, v13")
    a("s_nop 1")
    a("v_cndmask_b32 v64, 0, v64, vcc")
    a("v_add_u32 v65, 15, v64")
    a("v_lshrrev_b32 v65, 4, v65")
    a.c("level masks s[82:83].. computed into s[ 80+..]; use vcc-free pairs in s[44:47], s[80:87] region carefully")
    MS=[4,6,8,10,44,46,82,84]
    for j in range(8):
        a(f"v_cmp_lt_u32 s[{MS[j]}:{MS[j]+1}], {j}, v65")
    a("s_mov_b32 s81, 0")
    for j in range(8):
        a(f"v_mbcnt_lo_u32_b32 v{70+j}, s{MS[j]}, 0")
        a(f"v_mbcnt_hi_u32_b32 v{70+j}, s{MS[j]+1}, v{70+j}")
        a(f"s_bcnt1_i32_b64 s80, s[{MS[j]}:{MS[j]+1}]")
        a(f"v_add_u32 v{70+j}, s81, v{70+j}")
        a("s_add_u32 s81, s81, s80")
    a("v_cmp_lt_u32 vcc, 8, v65")
    a("v_mov_b32 v78, 0")
    a("s_mov_b32 s86, 0")
    a("s_cbranch_vccnz K3_TAIL")
    a.label("K3_TAILDONE")
    a.c("s81 = NG ; capacity check")
    a(f"s_cmp_gt_u32 s81, {MAXG}")
    a("s_cbranch_scc1 K3_SPLIT")
    a("s_cmp_lg_u32 s87, 0")
    a("s_cbranch_scc1 K3_MARKERS")
    a.label("K3_MARKDONE")
    for j in range(8):
        a(f"v_subrev_u32 v67, {16*j}, v64")
        a("v_min_u32 v67, 16, v67")
        a(f"v_lshlrev_b32 v69, 2, v{70+j}")
        a("v_lshl_add_u32 v67, v67, 22, v66")
        a(f"v_subrev_u32 v{70+j}, {j}, v{70+j}")
        a(f"s_mov_b64 exec, s[{MS[j]}:{MS[j]+1}]")
        a(f"ds_write_b32 v69, v67 offset:{DESC}")
        a("s_mov_b64 exec, -1")
        a(f"v_lshlrev_b32 v{70+j}, 6, v{70+j}")
    a("s_cmp_lg_u32 s86, 0")
    a("s_cbranch_scc1 K3_TAILDESC")
    a.label("K3_TAILDESCDONE")
    a("v_lshlrev_b32 v9, 6, v13")
    a(f"v_add_u32 v9, {TAB}, v9")
    a("ds_write_b128 v9, v[70:73]")
    a("ds_write_b128 v9, v[74:77] offset:16")
    a("ds_write_b32 v9, v78 offset:32")
    a("s_add_u32 s81, s81, 1")
    a("s_lshr_b32 s81, s81, 1")
    a("s_add_u32 s81, s81, 7")
    a(f"s_sub_u32 s81, s81, s{sWAVE}")
    a(f"s_lshr_b32 s{sCNT}, s81, 3")
    a.c("==== scatter")
    for r in range(16):
        a(f"v_lshrrev_b32 v9, 2, v{48+r}")
        a("v_and_b32 v9, -4, v9")
        a("v_min_u32 v9, 32, v9")
        a(f"v_lshl_add_u32 v9, v{32+r}, 4, v9")
        a(f"ds_read_b32 v{64+r}, v9")
    for r in range(16):
        i=r//4
        a(f"v_bfe_u32 v{32+r}, v{16+r}, 6, 12")
        if i==0: a(f"v_add_u32 v{32+r}, v{32+r}, v3")
        else:
            if r%4==0: a(f"s_mul_i32 s80, s{sSTEP}, {i}")
            a(f"v_add3_u32 v{32+r}, v{32+r}, v3, s80")
        a(f"v_lshrrev_b32 v{16+r}, 18, v{16+r}")
    a("s_waitcnt lgkmcnt(0)")
    for r in range(16):
        a(f"v_lshl_add_u32 v{64+r}, v{48+r}, 2, v{64+r}")
        a(f"v_lshrrev_b32 v{48+r}, 1, v{64+r}")
    for r in range(16):
        a(f"s_mov_b64 exec, s[{sM+2*r}:{sM+2*r+1}]")
        a(f"ds_write_b32 v{64+r}, v{32+r} offset:{LIST_E}")
        a(f"ds_write_b16 v{48+r}, v{16+r} offset:{LIST_S}")
    a("s_mov_b64 exec, -1")
    a.c("list address regs")
    a("v_lshrrev_b32 v8, 3, v13")
    a("v_lshlrev_b32 v8, 3, v8")
    a(f"s_lshl_b32 s80, s{sWAVE}, 6")
    a(f"v_add_u32 v{AS}, s80, v8")
    a("""
    v_and_b32 v8, 7, v13
    v_bfe_u32 v9, v13, 3, 2
    v_lshl_add_u32 v8, v8, 2, v9
    v_lshlrev_b32 v8, 2, v8
    """)
    a(f"s_lshl_b32 s80, s{sWAVE}, 7")
    a(f"v_add_u32 v{AE}, s80, v8")
    a("v_lshrrev_b32 v8, 5, v13")
    a("v_lshlrev_b32 v8, 2, v8")
    a(f"s_lshl_b32 s80, s{sWAVE}, 3")
    a(f"v_add_u32 v{AD}, s80, v8")
    a(f"v_mov_b32 v{CL2E+1}, v{CL2E}")
    a("s_waitcnt vmcnt(0) lgkmcnt(0)")
    a("s_barrier")
    stamp(3)
    a.c("==== main loop")
    a(f"s_cmp_eq_u32 s{sCNT}, 0")
    a("s_cbranch_scc1 K3_BATCHEND")
    for s in read_list(0): a(s)
    a(f"ds_read_b32 v{VD}, v{AD} offset:{DESC}")
    a("s_waitcnt lgkmcnt(0)")
    for s in issue_loads(0): a(s)
    for s in read_list(1): a(s)
    a("s_waitcnt lgkmcnt(0)")
    for s in issue_loads(1): a(s)
    for s in read_list(2): a(s)
    a("s_waitcnt vmcnt(5)")
    for s in read_operands(0): a(s)
    a(f"ds_read_b32 v{AN[1]}, v{NODEA[0]} offset:128")
    a("s_waitcnt lgkmcnt(0)")
    a(mfma(G[0], EE[0], WC+0, MK)); a(mfma(G[1], EE[0], WC+4, MK))
    for j in range(4): a(mfma(G[0], X+4*j, WB+4*(2*j), G[0]))
    for j in range(4): a(mfma(H[0], X+4*j, WV+4*(2*j), None if j==0 else H[0]))
    a("s_nop 7"); a("s_nop 7")
    stamp(4)
    a(".p2align 3")
    a.label("K3_LOOP")
    tile_body(a,0,0)
    a(f"s_sub_u32 s{sCNT}, s{sCNT}, 1")
    a(f"s_cmp_eq_u32 s{sCNT}, 0")
    a("s_cbranch_scc1 K3_BATCHEND")
    tile_body(a,1,1)
    a(f"v_add_u32 v{AS}, 1024, v{AS}")
    a(f"v_add_u32 v{AE}, 2048, v{AE}")
    a(f"v_add_u32 v{AD}, 128, v{AD}")
    a(f"s_sub_u32 s{sCNT}, s{sCNT}, 1")
    a(f"s_cmp_lg_u32 s{sCNT}, 0")
    a("s_cbranch_scc1 K3_LOOP")
    a.label("K3_BATCHEND")
    a("s_waitcnt vmcnt(0) lgkmcnt(0)")
    stamp(5)
    a("s_barrier")
    a.c("==== next batch?  mode 0: done with slots ; 1: second half next ; 2/3: overflow segments")
    a(f"s_cmp_eq_u32 s{sMODE}, 1")
    a("s_cbranch_scc1 K3_HALF2")
    a(f"v_mov_b32 v8, {OVF}")
    a("ds_read_b32 v9, v8")
    a("s_waitcnt lgkmcnt(0)")
    a("v_readfirstlane_b32 s80, v9")
    a("s_nop 3")
    a("s_cmp_eq_u32 s80, 0")
    a("s_cbranch_scc1 K3_EPI")
    a("s_lshl_b32 s81, s80, 2")
    a(f"s_add_u32 s81, s81, {OVF+12}")
    a("v_mov_b32 v8, s81")
    a("ds_read_b32 v9, v8")
    a("s_waitcnt lgkmcnt(0)")
    a("v_readfirstlane_b32 s82, v9")
    a("s_barrier")
    a("s_sub_u32 s80, s80, 1")
    a(f"v_mov_b32 v8, {OVF}")
    a("v_mov_b32 v9, s80")
    a("ds_write_b32 v8, v9")
    a("s_lshr_b32 s83, s82, 24")
    a("s_bfe_u32 s84, s82, 0xc000c")
    a("s_and_b32 s85, s82, 0xfff")
    a("s_mul_i32 s86, s83, 12500")
    a(f"s_add_u32 s86, s86, {WS_COMPACT}")
    a("s_lshl_b32 s84, s84, 2")
    a("s_add_u32 s86, s86, s84")
    a("s_lshl_b32 s85, s85, 2")
    a(f"s_add_u32 s{sREC+2}, s86, s85")
    a("s_mul_i32 s83, s83, 3125")
    a("v_mov_b32 v3, s83")
    a(f"s_mov_b32 s{sSTEP}, 0")
    a(f"s_mov_b32 s{sMODE}, 3")
    a("v_lshlrev_b32 v8, 4, v0")
    a("v_add_u32 v8, s86, v8")
    for i in range(4):
        a(f"buffer_load_dwordx4 {vr(16+4*i,4)}, v8, {sr(sREC,4)}, 0 offen")
        if i<3: a("v_add_u32 v8, 8192, v8")
    a("v_and_b32 v13, 63, v0")
    a("s_waitcnt vmcnt(0)")
    a("s_branch K3_BATCH")
    a.label("K3_SPLIT")
    a("s_waitcnt vmcnt(0) lgkmcnt(0)")
    a("s_barrier")
    a(f"s_mov_b32 s{sMODE}, 1")
    for i in range(2):
        a(f"buffer_load_dwordx4 {vr(16+4*i,4)}, v{RECO+i}, {sr(sREC,4)}, 0 offen")
    for r in range(8,16): a(f"v_mov_b32 v{16+r}, 0")
    a("s_waitcnt vmcnt(0)")
    a("s_branch K3_BATCH")
    a.label("K3_HALF2")
    a(f"s_mov_b32 s{sMODE}, 2")
    for i in range(2,4):
        a(f"buffer_load_dwordx4 {vr(16+4*i,4)}, v{RECO+i}, {sr(sREC,4)}, 0 offen")
    for r in range(8): a(f"v_mov_b32 v{16+r}, 0")
    a("v_lshrrev_b32 v8, 3, v0")
    a("s_movk_i32 s37, 3125")
    a("v_mul_u32_u24 v3, s37, v8")
    a("v_and_b32 v13, 63, v0")
    a("s_waitcnt vmcnt(0)")
    a("s_branch K3_BATCH")
    a.label("K3_MARKERS")
    a("v_lshrrev_b32 v8, 3, v0")
    a("v_mov_b32 v10, 1")
    a(f"v_mov_b32 v11, {OVF}")
    a(f"s_add_u32 s80, s{sCC}, 252")
    for r in range(16):
        lab=a.newlabel("K3_MK")
        a(f"v_cmp_eq_u32 vcc, s80, v{32+r}")
        a(f"s_and_b64 vcc, vcc, s[{sM+2*r}:{sM+2*r+1}]")
        a(f"s_cbranch_vccz {lab}")
        a(f"s_andn2_b64 s[{sM+2*r}:{sM+2*r+1}], s[{sM+2*r}:{sM+2*r+1}], vcc")
        a("s_mov_b64 exec, vcc")
        a("ds_add_rtn_u32 v9, v11, v10")
        a(f"v_add_u32 v12, {64*(r//4)}, v8")
        a("v_lshlrev_b32 v12, 24, v12")
        a(f"v_bfe_u32 v79, v{16+r}, 6, 12")
        a("v_lshl_add_u32 v12, v79, 12, v12")
        a(f"v_lshrrev_b32 v79, 18, v{16+r}")
        a("v_add_u32 v12, v79, v12")
        a("s_waitcnt lgkmcnt(0)")
        a("v_lshlrev_b32 v9, 2, v9")
        a(f"ds_write_b32 v9, v12 offset:{OVF+16}")
        a("s_mov_b64 exec, -1")
        a.label(lab)
    a("s_branch K3_MARKDONE")
    a.label("K3_TAIL")
    a("v_subrev_u32 v79, 8, v65")
    a("v_max_i32 v79, 0, v79")
    a("v_mov_b32 v80, v79")
    for sh in (1,2,4,8):
        a("s_nop 1")
        a(f"v_add_u32_dpp v80, v80, v80 row_shr:{sh} row_mask:0xf bank_mask:0xf bound_ctrl:0")
    a("s_nop 1")
    a("v_add_u32_dpp v80, v80, v80 row_bcast:15 row_mask:0xa bank_mask:0xf")
    a("s_nop 1")
    a("v_add_u32_dpp v80, v80, v80 row_bcast:31 row_mask:0xc bank_mask:0xf")
    a("s_nop 1")
    a("v_readlane_b32 s80, v80, 63")
    a("v_sub_u32 v80, v80, v79")
    a("v_add_u32 v80, s81, v80")
    a("v_subrev_u32 v78, 8, v80")
    a("v_lshlrev_b32 v78, 6, v78")
    a("s_add_u32 s81, s81, s80")
    a("s_mov_b32 s86, 1")
    a("s_branch K3_TAILDONE")
    a.label("K3_TAILDESC")
    a("s_mov_b32 s86, 8")
    a.label("K3_TLOOP")
    a("v_cmp_lt_u32 vcc, s86, v65")
    a("s_cbranch_vccz K3_TAILDESCDONE")
    a("s_lshl_b32 s80, s86, 4")
    a("v_subrev_u32 v67, s80, v64")
    a("v_min_u32 v67, 16, v67")
    a("v_lshl_add_u32 v67, v67, 22, v66")
    a("s_sub_u32 s80, s86, 8")
    a("v_add_u32 v69, s80, v80")
    a("v_lshlrev_b32 v69, 2, v69")
    a("s_mov_b64 exec, vcc")
    a(f"ds_write_b32 v69, v67 offset:{DESC}")
    a("s_mov_b64 exec, -1")
    a("s_add_u32 s86, s86, 1")
    a("s_branch K3_TLOOP")
    a.label("K3_EPI")
    a("v_and_b32 v13, 63, v0")
    a(f"s_and_b32 s37, s{sWAVE}, 1")
    a("s_cmp_eq_u32 s37, 0")
    a("s_cbranch_scc1 K3_EPI2")
    node_tile_addr("v10")
    node_tile_write(lambda r: f"a{AU+r}", "v10")
    a.label("K3_EPI2")
    a("s_waitcnt lgkmcnt(0)")
    a("s_barrier")
    a("v_cmp_gt_u32 vcc, 0x188, v0")
    a("s_and_saveexec_b64 s[38:39], vcc")
    a("s_cbranch_execz K3_END")
    a("v_lshrrev_b32 v8, 3, v0")
    a("v_and_b32 v9, 7, v0")
    a(f"v_mul_u32_u24 v10, {NREC}, v8")
    a("v_lshl_add_u32 v11, v9, 5, v10")
    a("v_lshl_add_u32 v10, v9, 6, v10")
    a(f"v_add_u32 v11, {NODE+NREC}, v11")
    a(f"v_add_u32 v10, {NODE+NREC}, v10")
    a("ds_read_b128 v[16:19], v11")
    a("ds_read_b128 v[20:23], v11 offset:16")
    for q in range(4):
        a(f"ds_read_b128 {vr(48+4*q,4)}, v10 offset:{256+16*q}")
        a(f"ds_read_b128 {vr(64+4*q,4)}, v10 offset:{768+16*q}")
    a(f"v_add_u32 v8, s{sNODE0}, v8")
    a("v_lshlrev_b32 v8, 7, v8")
    a("v_lshl_add_u32 v8, v9, 4, v8")
    a("s_mov_b32 s80, 0x358637bd")
    a("s_waitcnt lgkmcnt(0)")
    for i in range(8): a(f"v_cvt_f32_f64 v{24+i}, {vr(48+2*i,2)}")
    for i in range(8): a(f"v_cvt_f32_f64 v{32+i}, {vr(64+2*i,2)}")
    for i in range(8): a(f"v_add_f32 v{24+i}, s80, v{24+i}")
    for i in range(8): a(f"v_rcp_f32 v{24+i}, v{24+i}")
    a("s_nop 0")
    for i in range(8): a(f"v_fma_f32 v{16+i}, v{32+i}, v{24+i}, v{16+i}")
    for i in range(8): a(f"v_max_f32 v{16+i}, 0, v{16+i}")
    for i in range(4):
        a(f"v_lshlrev_b32 v40, 16, v{XEPI+i}")
        a(f"v_and_b32 v41, 0xffff0000, v{XEPI+i}")
        a(f"v_add_f32 v{16+2*i}, v40, v{16+2*i}")
        a(f"v_add_f32 v{17+2*i}, v41, v{17+2*i}")
    for i in range(4):
        a(f"v_cvt_pk_bf16_f32 v{44+i}, v{16+2*i}, v{17+2*i}")
    a(f"buffer_store_dwordx4 v[44:47], v8, {sr(sOUT,4)}, 0 offen")
    if STAMP:
        a("s_waitcnt vmcnt(0)")
        stamp(6)
        a("v_and_b32 v9, 63, v0")
        a("v_cmp_eq_u32 vcc, 0, v9")
        a("s_and_b64 exec, exec, vcc")
        a("s_cbranch_execz K3_END")
        a(f"s_mov_b32 s{sREC+2}, {WS_STAMP+256*8*64}")
        a(f"s_lshl_b32 s80, s2, 3")
        a(f"s_add_u32 s80, s80, s{sWAVE}")
        a(f"s_lshl_b32 s80, s80, 6")
        a(f"s_add_u32 s80, s80, {WS_STAMP}")
        a("v_mov_b32 v8, s80")
        for i in range(7):
            a(f"v_mov_b32 v16, s{88+2*i}")
            a(f"v_mov_b32 v17, s{89+2*i}")
            a(f"buffer_store_dwordx2 v[16:17], v8, {sr(sREC,4)}, 0 offen offset:{8*i}")
            a("s_nop 1")
    a.label("K3_END")
    a("s_endpgm")
    return a.text(), kdesc(name, 256, 102, 168)
```

```python
import sys
from k1 import gen_k1, K1_LDS
import k3
from k3 import gen_k3, K3_LDS
import os
k3.STAMP=os.environ['STAMP'].split(',') if os.environ.get('STAMP') else False
KN="standalone__edge_featured_mpnn_gatedgcn__graph"
hdr=open("cdna_kernels/"+KN+".s.ref").read().split("; Override launch geometry")[0]
k1,kd1=gen_k1("bucket_kernel")
k3,kd3=gen_k3(KN+"_kernel")
s=hdr
s+=f"; @launch kernel=bucket_kernel grid=(256,1,1) block=(1024,1,1) lds={K1_LDS}\n"
s+=f"; @launch kernel={KN}_kernel grid=(256,1,1) block=(512,1,1) lds={K3_LDS}\n"
s+='.amdgcn_target "amdgcn-amd-amdhsa--gfx950"\n.text\n'
s+=k1+k3
s+='.section .rodata,"a"\n'+kd1+kd3
out=sys.argv[1] if len(sys.argv)>1 else "cdna_kernels/"+KN+".s"
open(out,"w").write(s)
```

```python
from asmlib import *
from k1 import WS_SLOTS, WS_COMPACT, WS_W
import os
N=12500; E=800000
NREC=1280
NTILE=154
OVF=0; TCTR=4; MASK=1056; DESC=2144; LIST_S=3392; LIST_E=LIST_S+NTILE*64; NODE=LIST_E+NTILE*128
STAGE=(NODE+50*NREC+127)//128*128; K3_LDS=STAGE+65536
TROW=44
TAB=STAGE; XD=STAGE+4096
DESCN=(LIST_S-DESC)//16
LISTN=NTILE*192//16
assert DESC+(NTILE+1)*8<=LIST_S and K3_LDS<=163840, K3_LDS
assert LIST_E<65536
MAXG=2*NTILE-1
def wmain_addr(p):
    return STAGE+(3+(p>>2))*8192+4096+(p&3)*1024
def wau_addr(q):
    return STAGE+(4+(q>>2))*8192+(q&3)*1024
G=[16,48]; H=[32,64]; T=80; MK=96; X=112; EE=[128,132]
XRD=136; CCH=140; KH16=144; LOFF=145; AS=146; AE=147; AD=148; VM=149
SRC4=150; EID=152; VD=153; NODEA=[154,155]; AN=[156,158]; NODEB=[157,159]; XEPI=160; RECO=164
CL2E=2; CONE=14; DEN=4; NUM=6; LOF4=1
LS=164; LE=165; LD=166; VCT=167
VONE=13
WB=0; WV=32; WC=64; AU=72
sXB=12; sEA=16; sWS=20; sOUT=24; sWAVE=28; sNODE0=29; sSTEP=30; sNT=31; sMODE=32; sST0=33; sST1=34; s128=35
sREC=40; sM=48; sT1=44; sT2=45; sT3=46; sMOREC=47
STAMP=False
X_=set(os.environ.get('EXP','').split(','))
WS_STAMP=0xD00000

def mfma(d, a_, b_, c):
    cs = "0" if c is None else vr(c,16)
    return f"v_mfma_f32_32x32x16_bf16 {vr(d,16)}, {vr(a_,4)}, {ar(b_,4)}, {cs}"

def valu_block(blk):
    g=G[blk]; h=H[blk]; an=AN[blk]
    pk_t=[f"v_pk_fma_f32 {vr(T+2*i,2)}, {vr(g+2*i,2)}, {vr(CL2E,2)}, {vr(an,2)} op_sel_hi:[1,1,0]" for i in range(8)]
    ex=[f"v_exp_f32 v{T+i}, v{T+i}" for i in range(16)]
    pk_a=[f"v_pk_add_f32 {vr(T+2*i,2)}, {vr(T+2*i,2)}, {vr(CONE,2)}" for i in range(8)]
    rc=[f"v_rcp_f32 v{T+i}, v{T+i}" for i in range(16)]
    acc=[f"v_pk_add_f32 {vr(DEN,2)}, {vr(T,2)}, {vr(T+2,2)}",
         f"v_pk_mul_f32 {vr(NUM,2)}, {vr(T,2)}, {vr(h,2)}",
         f"v_pk_fma_f32 {vr(NUM,2)}, {vr(T+2,2)}, {vr(h+2,2)}, {vr(NUM,2)}"]
    for i in range(2,8):
        acc.append(f"v_pk_add_f32 {vr(DEN,2)}, {vr(T+2*i,2)}, {vr(DEN,2)}")
        acc.append(f"v_pk_fma_f32 {vr(NUM,2)}, {vr(T+2*i,2)}, {vr(h+2*i,2)}, {vr(NUM,2)}")
    return pk_t,ex,pk_a,rc,acc

def issue_loads(b):
    o=[]
    o.append(f"s_mov_b32 m0, s{sST0 if b==0 else sST1}")
    o.append(f"v_mad_u32_u16 v8, v{SRC4}, s{s128}, v{CCH}")
    o.append(f"v_mad_u32_u16 v9, v{SRC4}, s{s128}, v{CCH+1} op_sel:[1,0,0,0]")
    o.append(f"v_mad_u32_u16 v10, v{SRC4+1}, s{s128}, v{CCH+2}")
    o.append(f"v_mad_u32_u16 v11, v{SRC4+1}, s{s128}, v{CCH+3} op_sel:[1,0,0,0]")
    o.append(f"v_lshl_add_u32 v12, v{EID}, 5, v{KH16}" if 'esame' not in X_ else f"v_mov_b32 v12, v{KH16}")
    for i in range(4):
        o.append(f"buffer_load_dwordx4 v{8+i}, {sr(sXB,4)}, 0 offen offset:{1024*i} lds")
    o.append(f"buffer_load_dwordx4 {vr(EE[b],4)}, v12, {sr(sEA,4)}, 0 offen")
    return o

def list_addr(sT):
    return [f"s_lshl_b32 s80, s{sT}, 6", f"s_lshl_b32 s81, s{sT}, 7",
            f"v_add_u32 v{AS}, s80, v{LS}", f"v_add_u32 v{AE}, s81, v{LE}"]
def desc_addr(sT):
    return [f"s_lshl_b32 s80, s{sT}, 3", f"v_add_u32 v{AD}, s80, v{LD}"]
def read_list():
    return [f"ds_read_b64 {vr(SRC4,2)}, v{AS} offset:{LIST_S}",
            f"ds_read_b32 v{EID}, v{AE} offset:{LIST_E}"]
def fetch_tile():
    return ["s_mov_b64 exec, 1", f"ds_add_rtn_u32 v{VCT}, v{LOF4}, v{VONE} offset:{TCTR}", "s_mov_b64 exec, -1"]

def read_operands(bn):
    o=[]
    o.append(f"v_add_u32_sdwa v{NODEA[bn]}, v{VD}, v{LOFF} dst_sel:DWORD dst_unused:UNUSED_PAD src0_sel:WORD_0 src1_sel:DWORD")
    o.append(f"v_lshrrev_b32 v{VM}, 16, v{VD}")
    o.append(f"v_add_u32 v{NODEB[bn]}, v{NODEA[bn]}, v{LOF4}")
    for j in range(4):
        o.append(f"ds_read_b128 {vr(X+4*j,4)}, v{XRD+j} offset:{4096*bn}")
    for j in range(4):
        o.append(f"ds_read_b128 {vr(MK+4*j,4)}, v{VM} offset:{MASK+16*j}")
    o.append(f"ds_read_b32 v{AN[0]}, v{NODEA[bn]}")
    return o

def flush(blk,b):
    return [f"v_add_f32 v8, v{DEN}, v{DEN+1}", f"v_add_f32 v9, v{NUM}, v{NUM+1}",
            f"v_cvt_f64_f32 v[10:11], v8",
            f"v_cvt_f64_f32 v[8:9], v9",
            f"ds_add_f64 v{NODEB[b]}, v[10:11] offset:{256+256*blk}",
            f"ds_add_f64 v{NODEB[b]}, v[8:9] offset:{768+256*blk}"]

def mix(trans, groups):
    o=[]; ti=0
    for pre,n in groups:
        o+=pre; o+=trans[ti:ti+n]; ti+=n
    assert ti==len(trans), (ti,len(trans))
    return o

def filt(o):
    if 'nomfma' in X_: o=[x for x in o if 'mfma' not in x]
    if 'nolds' in X_: o=[x for x in o if not x.startswith('ds_read')]
    return o

def tile_body(a, b):
    bn=b^1
    pk_t,ex,pk_a,rc,acc=valu_block(0)
    ld=issue_loads(b)
    a.c(f"---- P0 parity {b}")
    a("s_waitcnt lgkmcnt(2)")
    o=[]
    da=desc_addr(sT1)
    g1=[mfma(G[1], X+4*j, WB+4*(2*j+1), G[1]) for j in range(4)]
    h1=[mfma(H[1], X+4*j, WV+4*(2*j+1), None if j==0 else H[1]) for j in range(4)]
    vm=ld[6:11]
    if 'novm' in X_: vm=["s_nop 0"]*5
    if 'vmpk' in X_:
        o+= [ld[0], da[0]] + ld[1:6] + [da[1]]
        for i in range(8):
            o.append(pk_t[i])
            if i<5: o.append(vm[i])
        o+= fetch_tile()
        o+= [f"ds_read_b32 v{VD}, v{AD} offset:{DESC}"]
        o+= mix(ex, [([g1[0]],3),([g1[1]],3),([g1[2]],3),([g1[3]],3),([h1[0]],4)])
    else:
        o+= [ld[0], da[0]] + pk_t[:1] + [da[1]] + pk_t[1:2] + ld[1:6] + pk_t[2:]
        o+= fetch_tile()
        o+= [f"ds_read_b32 v{VD}, v{AD} offset:{DESC}"]
        o+= mix(ex, [([g1[0]],1),([vm[0]],1),([vm[1]],1),([g1[1]],1),([vm[2]],1),([vm[3]],1),([g1[2]],2),([vm[4]],1),([g1[3]],3),([h1[0]],4)])
    o+= pk_a
    ro=read_operands(bn)
    w0=("s_waitcnt vmcnt(5) lgkmcnt(0)" if 'nowait' not in X_ else "s_waitcnt lgkmcnt(0)")
    rfl=f"v_readfirstlane_b32 s{sT3}, v{VCT}"
    if 'maskfirst' in X_:
        xs=ro[3:7]; ms=ro[7:11]; an=ro[11:]
        o+= mix(rc, [([h1[1]],3),([h1[2]],3),(["s_waitcnt lgkmcnt(0)"]+ro[:3]+ms[:2],1),(ms[2:]+an,1),([h1[3]],3),(["s_waitcnt vmcnt(5)"]+xs[:2],1),(xs[2:],1),([rfl],3)])
    elif 'ldspk' in X_:
        o+= mix(rc, [([h1[1]],4),([h1[2]],4),([h1[3]],8)])
        o+= [w0]+ro[:3]
        k=0
        rest=ro[3:]+[rfl]
        newacc=[]
        for i,x in enumerate(acc):
            newacc.append(x)
            if k<len(rest): newacc.append(rest[k]); k+=1
        acc=newacc+rest[k:]
    else:
        o+= mix(rc, [([h1[1]],4),([h1[2]],4),([h1[3]],3),([w0]+ro[:3]+ro[3:5],1),(ro[5:7],1),(ro[7:9],1),(ro[9:11],1),(ro[11:]+[rfl],1)])
    o+= acc + (flush(0,b) if 'noflush' not in X_ else ["s_nop 0","s_nop 0"])
    for s in filt(o): a(s)
    pk_t,ex,pk_a,rc,acc=valu_block(1)
    a.c(f"---- P1 parity {b}")
    o=[]
    la=list_addr(sT3)
    o+= la[:2] + pk_t[:4] + la[2:] + pk_t[4:]
    o+= read_list()
    o+= [f"ds_read_b32 v{AN[1]}, v{NODEA[bn]} offset:128"]
    g0e=mfma(G[0], EE[bn], WC+0, MK); g1e=mfma(G[1], EE[bn], WC+4, MK)
    g0=[mfma(G[0], X+4*j, WB+4*(2*j), G[0]) for j in range(4)]
    h0=[mfma(H[0], X+4*j, WV+4*(2*j), None if j==0 else H[0]) for j in range(4)]
    if 'maskfirst' in X_:
        o+= ["s_waitcnt lgkmcnt(9)"]
        o+= mix(ex, [([g0e],3),([g1e],3),(["s_waitcnt lgkmcnt(5)",g0[0]],3),([g0[1]],3),([g0[2]],4)])
    else:
        o+= ["s_waitcnt lgkmcnt(5)"]
        o+= mix(ex, [([g0e],3),([g1e],3),([g0[0]],3),([g0[1]],3),([g0[2]],4)])
    o+= pk_a
    o+= mix(rc, [([g0[3]],3),([h0[0]],3),([h0[1]],3),([h0[2]],3),([h0[3]],4)])
    o+= acc + (flush(1,b) if 'noflush' not in X_ else ["s_nop 0","s_nop 0"])
    for s in filt(o): a(s)
    a.c("rotate tile ring; continue while next tile < NT")
    a(f"s_cmp_lt_u32 s{sT1}, s{sNT}")
    a(f"s_mov_b32 s{sT1}, s{sT2}")
    a(f"s_mov_b32 s{sT2}, s{sT3}")

def gen_k3(name):
    a=Asm()
    def stamp(nm):
        if STAMP and nm in STAMP:
            i=STAMP.index(nm)
            a(f"s_mem{'real' if nm.startswith('rt') else ''}time s[{88+2*i}:{89+2*i}]")
            a("s_waitcnt lgkmcnt(0)")
    def rec_offsets():
        a.c("record offsets: p=(64i+(t>>3)+b)&255 ; off=b*32768+p*128+(t&7)*16")
        a("""
        v_lshrrev_b32 v8, 3, v0
        v_and_b32 v9, 7, v0
        v_lshlrev_b32 v9, 4, v9
        s_lshl_b32 s37, s2, 15
        v_add_u32 v9, s37, v9
        v_add_u32 v10, s2, v8
        """)
        for i in range(4):
            a(f"v_add_u32 v11, {64*i}, v10")
            a("v_and_b32 v11, 255, v11")
            a(f"v_lshl_add_u32 v{RECO+i}, v11, 7, v9")
        a("s_movk_i32 s37, 3125")
        a("v_mul_u32_u24 v3, s37, v8")
    a.raw(f".globl {name}\n.p2align 8\n.type {name},@function\n{name}:")
    a("s_cmp_ge_u32 s2, 256")
    a("s_cbranch_scc1 K3_END")
    stamp("start"); stamp("rt0")
    a("s_load_dwordx2 s[10:11], s[0:1], 88")
    a("s_load_dwordx4 s[4:7], s[0:1], 0")
    a("s_load_dwordx2 s[8:9], s[0:1], 72")
    a("v_lshrrev_b32 v1, 6, v0")
    a("v_and_b32 v13, 63, v0")
    a(f"v_readfirstlane_b32 s{sWAVE}, v1")
    a(f"s_mul_i32 s{sNODE0}, s2, 49")
    a(f"s_movk_i32 s{s128}, 128")
    a(f"s_mov_b32 s{sMODE}, 0")
    a(f"s_mov_b32 s{sSTEP}, 200000")
    rec_offsets()
    a.c("DMA chunk constants: lane=(p8,cpos): cA=(cpos^(p8>>1))*16 ; i odd: ^64 ; + 3072-1024*i")
    a("""
    v_lshrrev_b32 v10, 3, v13
    v_and_b32 v11, 7, v13
    v_lshrrev_b32 v12, 1, v10
    v_xor_b32 v11, v11, v12
    v_lshlrev_b32 v11, 4, v11
    """)
    for i in range(4):
        if i%2==1:
            a("v_xor_b32 v12, 64, v11"); a(f"v_add_u32 v{CCH+i}, {3072-1024*i}, v12")
        else:
            a(f"v_add_u32 v{CCH+i}, {3072-1024*i}, v11")
    a.c("x_dst DMA address: (node0+8v+p8)*128 + (cA ^ 64*(v&1)) + 3072")
    a(f"s_and_b32 s37, s{sWAVE}, 1")
    a("s_lshl_b32 s37, s37, 6")
    a("v_xor_b32 v11, s37, v11")
    a(f"s_lshl_b32 s38, s{sWAVE}, 3")
    a(f"s_add_u32 s38, s38, s{sNODE0}")
    a("v_add_u32 v10, s38, v10")
    a("v_lshl_add_u32 v10, v10, 7, v11")
    a("v_add_u32 v10, 3072, v10")
    a("v_lshlrev_b32 v11, 4, v13")
    a("v_lshrrev_b32 v8, 3, v0")
    a(f"v_add_u32 v8, s{sNODE0}, v8")
    a("v_lshlrev_b32 v8, 7, v8")
    a("v_and_b32 v9, 7, v0")
    a("v_lshl_add_u32 v8, v9, 4, v8")
    a("v_add_u32 v12, 3072, v8")
    a(f"s_lshl_b32 s80, s{sWAVE}, 13")
    a(f"s_add_u32 s{sST0}, s80, {STAGE}")
    a(f"s_add_u32 s{sST1}, s{sST0}, 4096")
    a("s_waitcnt lgkmcnt(0)")
    stamp("karg")
    a.c("---- SRDs + prologue loads")
    a.srd(sREC, 10, 11, WS_COMPACT)
    for i in range(4):
        a(f"buffer_load_dwordx4 {vr(16+4*i,4)}, v{RECO+i}, {sr(sREC,4)}, 0 offen")
    a(f"s_sub_u32 s{sXB}, s4, 3072")
    a(f"s_subb_u32 s{sXB+1}, s5, 0")
    a(f"s_and_b32 s{sXB+1}, s{sXB+1}, 0xffff")
    a(f"s_mov_b32 s{sXB+2}, {N*128+3072}")
    a(f"s_mov_b32 s{sXB+3}, 0x20000")
    a.srd(sWS, 10, 11, WS_W+34*1024)
    a(f"s_lshl_b32 s80, s{sWAVE}, 10")
    a(f"s_add_u32 m0, s80, {XD}")
    a("s_nop 0")
    a(f"buffer_load_dwordx4 v10, {sr(sXB,4)}, 0 offen lds")
    for r in range(5):
        skip=a.newlabel("K3_WSK")
        a(f"s_add_u32 s80, s{sWAVE}, {8*r}")
        if r==4:
            a("s_cmp_ge_u32 s80, 34")
            a(f"s_cbranch_scc1 {skip}")
        a("s_cmp_ge_u32 s80, 18")
        a("s_cselect_b32 s81, 18, 0")
        a("s_cselect_b32 s82, 0x1000, 0")
        a(f"s_add_u32 s82, s82, {STAGE+4096+3*8192}")
        a("s_sub_u32 s81, s80, s81")
        a("s_lshr_b32 s83, s81, 2")
        a("s_lshl_b32 s83, s83, 13")
        a("s_and_b32 s81, s81, 3")
        a("s_lshl_b32 s81, s81, 10")
        a("s_add_u32 s82, s82, s83")
        a("s_add_u32 m0, s82, s81")
        a("s_lshl_b32 s80, s80, 10")
        a(f"s_add_u32 s80, s80, {WS_W}")
        a(f"buffer_load_dwordx4 v11, {sr(sWS,4)}, s80 offen lds")
        if r==4: a.label(skip)
    a(f"buffer_load_dwordx4 {vr(XEPI,4)}, v12, {sr(sXB,4)}, 0 offen")
    a.srd(sEA, 6, 7, E*32)
    a.srd(sOUT, 8, 9, N*128)
    stamp("issued")
    a.c("---- one-time LDS init: NODE region zero, mask table, ovf count")
    a("""
    v_mov_b32 v4, 0
    v_mov_b32 v5, 0
    v_mov_b32 v6, 0
    v_mov_b32 v7, 0
    v_lshlrev_b32 v8, 4, v0
    """)
    a(f"v_add_u32 v8, {NODE}, v8")
    nn=50*NREC//16
    for i in range((nn+511)//512):
        last=(i+1)*512>nn
        if last:
            a(f"v_cmp_gt_u32 vcc, {nn-i*512}, v0")
            a("s_and_saveexec_b64 s[38:39], vcc")
        a(f"ds_write_b128 v8, v[4:7] offset:{8192*i}")
        if last: a("s_mov_b64 exec, s[38:39]")
    a("""
    v_lshrrev_b32 v8, 4, v0
    v_and_b32 v9, 3, v0
    v_bfe_u32 v10, v0, 2, 2
    v_lshl_add_u32 v9, v9, 2, v10
    v_mov_b32 v11, 0xf149f2ca
    v_cmp_lt_u32 vcc, v9, v8
    v_lshlrev_b32 v10, 2, v0
    s_nop 0
    v_cndmask_b32 v11, v11, v4, vcc
    v_cmp_gt_u32 vcc, 0x110, v0
    s_and_saveexec_b64 s[38:39], vcc
    """)
    a(f"ds_write_b32 v10, v11 offset:{MASK}")
    a("s_mov_b64 exec, s[38:39]")
    a(f"v_mov_b32 v8, {OVF}")
    a("ds_write_b32 v8, v4")
    a.c("---- per-lane constants for main loop")
    a("""
    v_and_b32 v8, 31, v13
    v_lshrrev_b32 v9, 5, v13
    v_bfe_u32 v10, v13, 1, 3
    v_lshlrev_b32 v11, 2, v9
    v_xor_b32 v10, v10, v11
    v_lshlrev_b32 v11, 7, v8
    """)
    a(f"v_add_u32 v11, s{sST0}, v11")
    for j in range(4):
        a(f"v_xor_b32 v12, {j}, v10")
        a(f"v_lshl_add_u32 v{XRD+j}, v12, 4, v11")
    a(f"v_lshlrev_b32 v{KH16}, 4, v9")
    a(f"v_lshlrev_b32 v{LOF4}, 2, v8")
    a(f"v_add_u32 v{LOFF}, {NODE}, v{LOF4}")
    a(f"v_mov_b32 v{CL2E}, 0xbfb8aa3b")
    a(f"v_mov_b32 v{CONE}, 1.0")
    a(f"v_mov_b32 v{CONE+1}, 1.0")
    a.c("==== batch start: prefill lists / desc / table / tile counter")
    a.label("K3_BATCH")
    a("v_lshlrev_b32 v8, 4, v0")
    a("v_mov_b32 v4, -1\nv_mov_b32 v5, -1\nv_mov_b32 v6, -1\nv_mov_b32 v7, -1")
    for i in range((LISTN+511)//512):
        last=(i+1)*512>LISTN
        if last:
            a(f"v_cmp_gt_u32 vcc, {LISTN-i*512}, v0")
            a("s_and_saveexec_b64 s[38:39], vcc")
        a(f"ds_write_b128 v8, v[4:7] offset:{LIST_S+8192*i}")
        if last: a("s_mov_b64 exec, s[38:39]")
    a("v_mov_b32 v4, 0\nv_mov_b32 v5, 0\nv_mov_b32 v6, 0\nv_mov_b32 v7, 0")
    a(f"v_cmp_gt_u32 vcc, {DESCN}, v0")
    a("s_and_saveexec_b64 s[38:39], vcc")
    a(f"ds_write_b128 v8, v[4:7] offset:{DESC}")
    a("s_mov_b64 exec, s[38:39]")
    a(f"v_add_u32 v9, {TAB}, v8")
    a(f"v_cmp_gt_u32 vcc, {64*TROW//16}, v0")
    a("s_and_saveexec_b64 s[38:39], vcc")
    a("ds_write_b128 v9, v[4:7]")
    a("s_mov_b64 exec, s[38:39]")
    a(f"v_mov_b32 v9, {TCTR}")
    a("v_mov_b32 v10, 16")
    a("ds_write_b32 v9, v10")
    a("s_waitcnt lgkmcnt(0)")
    stamp("prefill")
    a("s_barrier")
    a.c("==== histogram / rank")
    a("s_waitcnt vmcnt(6)")
    stamp("rec")
    a("v_mov_b32 v8, 1")
    a(f"v_mov_b32 v10, {TROW}")
    a(f"v_mov_b32 v11, {TAB}")
    for r in range(16):
        a(f"v_and_b32 v9, 63, v{16+r}")
        a(f"v_mad_u32_u24 v{32+r}, v9, v10, v11")
        a(f"v_cmp_ne_u32 s[{sM+2*r}:{sM+2*r+1}], 0, v9")
    for r in range(16):
        a(f"s_mov_b64 exec, s[{sM+2*r}:{sM+2*r+1}]")
        a(f"ds_add_rtn_u32 v{48+r}, v{32+r}, v8 offset:40")
    a("s_mov_b64 exec, -1")
    a.c("eid / src extraction while the atomics are in flight")
    for i in range(1,4):
        a(f"s_mul_i32 s80, s{sSTEP}, {i}")
        a(f"v_add_u32 v{80+i}, s80, v3")
    a("v_mov_b32 v80, v3")
    for r in range(16):
        a(f"v_bfe_u32 v{64+r}, v{16+r}, 6, 12")
        a(f"v_add_u32 v{64+r}, v{64+r}, v{80+r//4}")
    a("s_waitcnt vmcnt(0) lgkmcnt(0)")
    a("s_barrier")
    stamp("hist")
    a.c("==== scan: wave v handles level j=v ; lane = d1")
    a(f"v_mad_u32_u24 v9, v13, v10, v11")
    a("ds_read_b32 v84, v9 offset:40")
    a(f"s_cmp_lg_u32 s{sMODE}, 0")
    a("s_cbranch_scc1 K3_NOOPR")
    a.c("node GEMM operands: A -> X regs (x_dst rows), B -> MK regs")
    a(f"s_bfe_u32 s38, s{sWAVE}, 0x10001")
    a("s_lshl_b32 s80, s38, 12")
    a(f"s_add_u32 s80, s80, {XD}")
    a(f"s_sub_u32 s80, s80, s{sST0}")
    for j in range(4):
        a(f"v_add_u32 v12, s80, v{XRD+j}")
        a(f"ds_read_b128 {vr(X+4*j,4)}, v12")
    a(f"s_and_b32 s37, s{sWAVE}, 1")
    a(f"s_lshr_b32 s39, s{sWAVE}, 2")
    a("s_lshl_b32 s80, s37, 14")
    a("s_lshl_b32 s81, s39, 10")
    a("s_add_u32 s80, s80, s81")
    a(f"s_add_u32 s80, s80, {STAGE+4*8192}")
    a("v_lshlrev_b32 v12, 4, v13")
    a("v_add_u32 v12, s80, v12")
    for j in range(4):
        a(f"ds_read_b128 {vr(MK+4*j,4)}, v12 offset:{(j>>1)*8192+(j&1)*2048}")
    a("s_waitcnt lgkmcnt(8)")
    a("s_branch K3_OPRDONE")
    a.label("K3_NOOPR")
    a("s_waitcnt lgkmcnt(0)")
    a.label("K3_OPRDONE")
    a(f"v_mul_u32_u24 v86, {NREC}, v13")
    a("v_readlane_b32 s87, v84, 63")
    a("v_cmp_gt_u32 vcc, 50, v13")
    a("s_nop 1")
    a("v_cndmask_b32 v84, 0, v84, vcc")
    a("v_add_u32 v85, 15, v84")
    a("v_lshrrev_b32 v85, 4, v85")
    MS=[4,6,8,10,82,84]
    a(f"s_mov_b32 s81, 0"); a("s_mov_b32 s86, 0")
    for j in range(8):
        a(f"v_cmp_lt_u32 s[4:5], {j}, v85")
        a("s_bcnt1_i32_b64 s80, s[4:5]")
        a(f"s_cmp_gt_u32 s{sWAVE}, {j}")
        a("s_cselect_b32 s36, s80, 0")
        a("s_add_u32 s81, s81, s80")
        a("s_add_u32 s86, s86, s36")
    a(f"v_cmp_lt_u32 s[4:5], s{sWAVE}, v85")
    a("v_cmp_lt_u32 vcc, 8, v85")
    a("s_mov_b32 s36, 0")
    a("s_cbranch_vccnz K3_TAIL")
    a.label("K3_TAILDONE")
    a(f"s_cmp_gt_u32 s81, {MAXG}")
    a("s_cbranch_scc1 K3_SPLIT")
    a("s_cmp_lg_u32 s87, 0")
    a("s_cbranch_scc1 K3_MARKERS")
    a.label("K3_MARKDONE")
    a("v_mbcnt_lo_u32_b32 v87, s4, 0")
    a("v_mbcnt_hi_u32_b32 v87, s5, v87")
    a(f"s_lshl_b32 s80, s{sWAVE}, 4")
    a("v_subrev_u32 v88, s80, v84")
    a("v_add_u32 v87, s86, v87")
    a("v_min_u32 v88, 16, v88")
    a("v_lshlrev_b32 v89, 2, v87")
    a("v_lshl_add_u32 v88, v88, 22, v86")
    a(f"v_subrev_u32 v87, s{sWAVE}, v87")
    a("v_lshlrev_b32 v87, 6, v87")
    a(f"s_lshl_b32 s80, s{sWAVE}, 2")
    a("v_add_u32 v9, s80, v9")
    a("ds_write_b32 v9, v87")
    a("s_mov_b64 exec, s[4:5]")
    a(f"ds_write_b32 v89, v88 offset:{DESC}")
    a("s_mov_b64 exec, -1")
    a("s_cmp_lg_u32 s36, 0")
    a("s_cbranch_scc1 K3_TAILDESC")
    a.label("K3_TAILDESCDONE")
    a("s_add_u32 s81, s81, 1")
    a(f"s_lshr_b32 s{sNT}, s81, 1")
    a.c("scatter part 1 (independent of the table)")
    for r in range(16):
        a(f"v_lshrrev_b32 v9, 4, v{48+r}")
        a("v_min_u32 v9, 8, v9")
        a(f"v_lshl_add_u32 v{32+r}, v9, 2, v{32+r}")
        a(f"v_lshrrev_b32 v{16+r}, 18, v{16+r}")
    a("s_waitcnt lgkmcnt(0)")
    a("s_barrier")
    stamp("scan")
    a.c("==== scatter")
    for r in range(16):
        a(f"ds_read_b32 v{32+r}, v{32+r}")
    a.c("list lane parts")
    a("v_lshrrev_b32 v8, 3, v13")
    a(f"v_lshlrev_b32 v{LS}, 3, v8")
    a("""
    v_and_b32 v8, 7, v13
    v_bfe_u32 v9, v13, 3, 2
    v_lshl_add_u32 v8, v8, 2, v9
    """)
    a(f"v_lshlrev_b32 v{LE}, 2, v8")
    a("v_lshrrev_b32 v8, 5, v13")
    a(f"v_lshlrev_b32 v{LD}, 2, v8")
    a(f"v_mov_b32 v{CL2E+1}, v{CL2E}")
    for r in range(16):
        if r==0: a("s_waitcnt lgkmcnt(8)")
        if r==8: a("s_waitcnt lgkmcnt(8)") if False else a("s_waitcnt lgkmcnt(0)")
        a(f"v_lshl_add_u32 v{32+r}, v{48+r}, 2, v{32+r}")
        a(f"v_lshrrev_b32 v{48+r}, 1, v{32+r}")
    for r in range(16):
        a(f"s_mov_b64 exec, s[{sM+2*r}:{sM+2*r+1}]")
        a(f"ds_write_b32 v{32+r}, v{64+r} offset:{LIST_E}")
        a(f"ds_write_b16 v{48+r}, v{16+r} offset:{LIST_S}")
    a("s_mov_b64 exec, -1")
    a(f"v_mov_b32 v{VONE}, 1")
    a(f"s_mov_b32 s{sT1}, s{sWAVE}")
    a(f"s_add_u32 s{sT2}, s{sWAVE}, 8")
    for s in list_addr(sT1): a(s)
    a("s_waitcnt lgkmcnt(0)")
    a("s_barrier")
    stamp("main")
    a.c("==== pipeline prologue: tile T0 = wave, T1 = wave+8, then dynamic")
    for s in read_list(): a(s)
    for s in desc_addr(sT1): a(s)
    a(f"ds_read_b32 v{VD}, v{AD} offset:{DESC}")
    for s in fetch_tile(): a(s)
    a("s_waitcnt lgkmcnt(2)")
    for s in issue_loads(0): a(s)
    a(f"s_cmp_lg_u32 s{sMODE}, 0")
    a("s_cbranch_scc1 K3_NOW")
    a.c("node GEMM -> a[72:87]; main weights -> a[0:71]")
    for j in range(4):
        c = "0" if j==0 else ar(AU,16)
        a(f"v_mfma_f32_32x32x16_bf16 {ar(AU,16)}, {vr(X+4*j,4)}, {vr(MK+4*j,4)}, {c}")
    a("v_lshrrev_b32 v9, 3, v0") if False else None
    a("v_and_b32 v9, 63, v0")
    a("v_lshlrev_b32 v9, 4, v9")
    a(f"v_add_u32 v9, {STAGE+4096+3*8192}, v9")
    for p in range(18):
        a(f"ds_read_b128 {ar(4*p,4)}, v9 offset:{(p>>2)*8192+(p&3)*1024}")
    a(f"s_and_b32 s37, s{sWAVE}, 1")
    a("s_cmp_eq_u32 s37, 1")
    a("s_cbranch_scc1 K3_NOW")
    a.c("A waves: Aneg = -log2e * D -> node records")
    a(f"s_bfe_u32 s38, s{sWAVE}, 0x10001")
    a(f"s_lshr_b32 s39, s{sWAVE}, 2")
    a(f"s_mul_i32 s80, s38, {32*NREC}")
    a("s_lshl_b32 s81, s39, 7")
    a("s_add_u32 s80, s80, s81")
    a(f"s_add_u32 s80, s80, {NREC}")
    a("v_bfe_u32 v9, v0, 5, 1")
    a(f"v_mul_u32_u24 v9, {4*NREC}, v9")
    a(f"v_add_u32 v10, v9, v{LOFF}")
    a("v_add_u32 v10, s80, v10")
    for r in range(16):
        a(f"v_accvgpr_read_b32 v{64+r}, a{AU+r}")
    for r in range(16):
        a(f"v_mul_f32 v{64+r}, v{CL2E}, v{64+r}")
    lab=a.newlabel("K3_NW"); end=a.newlabel("K3_NWE")
    for r in range(8):
        a(f"ds_write_b32 v10, v{64+r} offset:{((r&3)+8*(r>>2))*NREC}")
    a("s_cmp_eq_u32 s38, 1")
    a(f"s_cbranch_scc1 {lab}")
    for r in range(8,16):
        a(f"ds_write_b32 v10, v{64+r} offset:{((r&3)+8*(r>>2))*NREC}")
    a(f"s_branch {end}")
    a.label(lab)
    a("s_mov_b32 exec_hi, 0")
    a(f"ds_write_b32 v10, v72 offset:{16*NREC}")
    a("s_mov_b32 exec_hi, -1")
    a.label(end)
    a.label("K3_NOW")
    a("s_waitcnt lgkmcnt(0)")
    a("s_barrier")
    stamp("wread")
    a(f"v_readfirstlane_b32 s{sT3}, v{VCT}")
    for s in list_addr(sT2): a(s)
    for s in read_list(): a(s)
    a("s_waitcnt lgkmcnt(0)")
    for s in issue_loads(1): a(s)
    for s in list_addr(sT3): a(s)
    for s in read_list(): a(s)
    a(f"s_cmp_ge_u32 s{sT1}, s{sNT}")
    a("s_cbranch_scc1 K3_BATCHEND")
    a.c("ring: current = T1(old) ; next = T2 ; next2 = T3")
    a(f"s_mov_b32 s{sT1}, s{sT2}")
    a(f"s_mov_b32 s{sT2}, s{sT3}")
    a("s_waitcnt vmcnt(5)")
    for s in read_operands(0): a(s)
    a(f"ds_read_b32 v{AN[1]}, v{NODEA[0]} offset:128")
    a("s_waitcnt lgkmcnt(0)")
    a(mfma(G[0], EE[0], WC+0, MK)); a(mfma(G[1], EE[0], WC+4, MK))
    for j in range(4): a(mfma(G[0], X+4*j, WB+4*(2*j), G[0]))
    for j in range(4): a(mfma(H[0], X+4*j, WV+4*(2*j), None if j==0 else H[0]))
    a("s_nop 7"); a("s_nop 7")
    if 'prio47' in X_ or 'prio03' in X_:
        a(f"s_cmp_ge_u32 s{sWAVE}, 4")
        a("s_cbranch_scc0 K3_NOPRIO" if 'prio47' in X_ else "s_cbranch_scc1 K3_NOPRIO")
        a("s_setprio 1")
        a.label("K3_NOPRIO")
    stamp("pipe")
    al=os.environ.get('ALIGN')
    if al:
        p,off=al.split(':')
        a(f".p2align {p}")
        for _ in range(int(off)//4): a("s_nop 0")
    else: a(".p2align 3")
    a.label("K3_LOOP")
    tile_body(a,0)
    a("s_cbranch_scc0 K3_BATCHEND")
    tile_body(a,1)
    a("s_cbranch_scc1 K3_LOOP")
    a.label("K3_BATCHEND")
    a("s_waitcnt vmcnt(0) lgkmcnt(0)")
    stamp("loopend")
    a.c("U waves park their U tile in their own stage area")
    a(f"s_and_b32 s37, s{sWAVE}, 1")
    a("s_cmp_eq_u32 s37, 0")
    a("s_cbranch_scc1 K3_NOU")
    a("v_bfe_u32 v9, v0, 5, 1")
    a("v_lshlrev_b32 v9, 9, v9")
    a(f"v_add_u32 v9, v9, v{LOF4}")
    a(f"v_add_u32 v9, s{sST0}, v9")
    for r in range(16):
        a(f"ds_write_b32 v9, a{AU+r} offset:{((r&3)+8*(r>>2))*128}")
    a.label("K3_NOU")
    a(f"v_mov_b32 v8, {OVF}")
    a("s_waitcnt lgkmcnt(0)")
    a("s_barrier")
    a.c("==== next batch?  mode 0: done with slots ; 1: second half next ; 2/3: overflow segments")
    a("ds_read_b32 v9, v8")
    a("v_cmp_gt_u32 vcc, 0x188, v0")
    a("v_lshrrev_b32 v16, 3, v0")
    a("v_and_b32 v17, 7, v0")
    a(f"v_mul_u32_u24 v10, {NREC}, v16")
    a("v_lshl_add_u32 v10, v17, 6, v10")
    a(f"v_add_u32 v10, {NODE+NREC}, v10")
    a("v_lshrrev_b32 v11, 5, v16")
    a("v_lshrrev_b32 v12, 2, v17")
    a("v_lshlrev_b32 v11, 14, v11")
    a("v_lshl_add_u32 v11, v12, 15, v11")
    a("v_and_b32 v12, 31, v16")
    a("v_lshl_add_u32 v11, v12, 7, v11")
    a("v_and_b32 v12, 3, v17")
    a("v_lshl_add_u32 v11, v12, 5, v11")
    a(f"v_add_u32 v11, {STAGE+8192}, v11")
    a(f"s_cmp_eq_u32 s{sMODE}, 1")
    a("s_cbranch_scc1 K3_HALF2")
    a("s_waitcnt lgkmcnt(0)")
    a("v_readfirstlane_b32 s80, v9")
    a("s_nop 3")
    a("s_cmp_eq_u32 s80, 0")
    a("s_cbranch_scc1 K3_EPI")
    a("s_lshl_b32 s81, s80, 2")
    a(f"s_add_u32 s81, s81, {OVF+12}")
    a("v_mov_b32 v8, s81")
    a("ds_read_b32 v9, v8")
    a("s_waitcnt lgkmcnt(0)")
    a("v_readfirstlane_b32 s82, v9")
    a("s_barrier")
    a("s_sub_u32 s80, s80, 1")
    a(f"v_mov_b32 v8, {OVF}")
    a("v_mov_b32 v9, s80")
    a("ds_write_b32 v8, v9")
    a("s_lshr_b32 s83, s82, 24")
    a("s_bfe_u32 s84, s82, 0xc000c")
    a("s_and_b32 s85, s82, 0xfff")
    a("s_mul_i32 s86, s83, 12500")
    a(f"s_add_u32 s86, s86, {WS_COMPACT}")
    a("s_lshl_b32 s84, s84, 2")
    a("s_add_u32 s86, s86, s84")
    a("s_lshl_b32 s85, s85, 2")
    a(f"s_add_u32 s{sREC+2}, s86, s85")
    a("s_mul_i32 s83, s83, 3125")
    a("v_mov_b32 v3, s83")
    a(f"s_mov_b32 s{sSTEP}, 0")
    a(f"s_mov_b32 s{sMODE}, 3")
    a("v_lshlrev_b32 v8, 4, v0")
    a("v_add_u32 v8, s86, v8")
    for i in range(4):
        a(f"buffer_load_dwordx4 {vr(16+4*i,4)}, v8, {sr(sREC,4)}, 0 offen")
        if i<3: a("v_add_u32 v8, 8192, v8")
    a("v_and_b32 v13, 63, v0")
    a("s_waitcnt vmcnt(0)")
    a("s_branch K3_BATCH")
    a.label("K3_SPLIT")
    a("s_waitcnt vmcnt(0) lgkmcnt(0)")
    a.c("first pass also has to finish the one-time work (node GEMM, weights) that the restart skips")
    for j in range(4):
        c = "0" if j==0 else ar(AU,16)
        a(f"v_mfma_f32_32x32x16_bf16 {ar(AU,16)}, {vr(X+4*j,4)}, {vr(MK+4*j,4)}, {c}")
    a("v_and_b32 v9, 63, v0")
    a("v_lshlrev_b32 v9, 4, v9")
    a(f"v_add_u32 v9, {STAGE+4096+3*8192}, v9")
    for p in range(18):
        a(f"ds_read_b128 {ar(4*p,4)}, v9 offset:{(p>>2)*8192+(p&3)*1024}")
    a(f"s_and_b32 s37, s{sWAVE}, 1")
    a("s_cmp_eq_u32 s37, 1")
    a("s_cbranch_scc1 K3_SPLIT2")
    a(f"s_bfe_u32 s38, s{sWAVE}, 0x10001")
    a(f"s_lshr_b32 s39, s{sWAVE}, 2")
    a(f"s_mul_i32 s80, s38, {32*NREC}")
    a("s_lshl_b32 s81, s39, 7")
    a("s_add_u32 s80, s80, s81")
    a(f"s_add_u32 s80, s80, {NREC}")
    a("v_bfe_u32 v9, v0, 5, 1")
    a(f"v_mul_u32_u24 v9, {4*NREC}, v9")
    a(f"v_add_u32 v10, v9, v{LOFF}")
    a("v_add_u32 v10, s80, v10")
    a("s_nop 7")
    for r in range(16):
        a(f"v_accvgpr_read_b32 v{64+r}, a{AU+r}")
    for r in range(16):
        a(f"v_mul_f32 v{64+r}, v{CL2E}, v{64+r}")
    lab=a.newlabel("K3_NW"); end=a.newlabel("K3_NWE")
    for r in range(8):
        a(f"ds_write_b32 v10, v{64+r} offset:{((r&3)+8*(r>>2))*NREC}")
    a("s_cmp_eq_u32 s38, 1")
    a(f"s_cbranch_scc1 {lab}")
    for r in range(8,16):
        a(f"ds_write_b32 v10, v{64+r} offset:{((r&3)+8*(r>>2))*NREC}")
    a(f"s_branch {end}")
    a.label(lab)
    a("s_mov_b32 exec_hi, 0")
    a(f"ds_write_b32 v10, v72 offset:{16*NREC}")
    a("s_mov_b32 exec_hi, -1")
    a.label(end)
    a.label("K3_SPLIT2")
    a("s_waitcnt lgkmcnt(0)")
    a("s_barrier")
    a(f"s_mov_b32 s{sMODE}, 1")
    for i in range(2):
        a(f"buffer_load_dwordx4 {vr(16+4*i,4)}, v{RECO+i}, {sr(sREC,4)}, 0 offen")
    for r in range(8,16): a(f"v_mov_b32 v{16+r}, 0")
    a("s_waitcnt vmcnt(0)")
    a("s_branch K3_BATCH")
    a.label("K3_HALF2")
    a(f"s_mov_b32 s{sMODE}, 2")
    rec_offsets()
    for i in range(2,4):
        a(f"buffer_load_dwordx4 {vr(16+4*i,4)}, v{RECO+i}, {sr(sREC,4)}, 0 offen")
    for r in range(8): a(f"v_mov_b32 v{16+r}, 0")
    a("v_and_b32 v13, 63, v0")
    a("s_waitcnt vmcnt(0) lgkmcnt(0)")
    a("s_branch K3_BATCH")
    a.label("K3_MARKERS")
    a("v_lshrrev_b32 v8, 3, v0")
    a("v_mov_b32 v10, 1")
    a(f"v_mov_b32 v11, {OVF}")
    a(f"s_mov_b32 s80, {TAB+63*TROW}")
    for r in range(16):
        lab=a.newlabel("K3_MK")
        a(f"v_cmp_eq_u32 vcc, s80, v{32+r}")
        a(f"s_and_b64 vcc, vcc, s[{sM+2*r}:{sM+2*r+1}]")
        a(f"s_cbranch_vccz {lab}")
        a(f"s_andn2_b64 s[{sM+2*r}:{sM+2*r+1}], s[{sM+2*r}:{sM+2*r+1}], vcc")
        a("s_mov_b64 exec, vcc")
        a("ds_add_rtn_u32 v90, v11, v10")
        a(f"v_add_u32 v12, {64*(r//4)}, v8")
        a("v_lshlrev_b32 v12, 24, v12")
        a(f"v_bfe_u32 v91, v{16+r}, 6, 12")
        a("v_lshl_add_u32 v12, v91, 12, v12")
        a(f"v_lshrrev_b32 v91, 18, v{16+r}")
        a("v_add_u32 v12, v91, v12")
        a("s_waitcnt lgkmcnt(0)")
        a("v_lshlrev_b32 v90, 2, v90")
        a(f"ds_write_b32 v90, v12 offset:{OVF+16}")
        a("s_mov_b64 exec, -1")
        a.label(lab)
    a("s_branch K3_MARKDONE")
    a.label("K3_TAIL")
    a("v_subrev_u32 v90, 8, v85")
    a("v_max_i32 v90, 0, v90")
    a("v_mov_b32 v91, v90")
    for sh in (1,2,4,8):
        a("s_nop 1")
        a(f"v_add_u32_dpp v91, v91, v91 row_shr:{sh} row_mask:0xf bank_mask:0xf bound_ctrl:0")
    a("s_nop 1")
    a("v_add_u32_dpp v91, v91, v91 row_bcast:15 row_mask:0xa bank_mask:0xf")
    a("s_nop 1")
    a("v_add_u32_dpp v91, v91, v91 row_bcast:31 row_mask:0xc bank_mask:0xf")
    a("s_nop 1")
    a("v_readlane_b32 s80, v91, 63")
    a("v_sub_u32 v91, v91, v90")
    a("v_add_u32 v91, s81, v91")
    a("v_subrev_u32 v92, 8, v91")
    a("v_lshlrev_b32 v92, 6, v92")
    a("ds_write_b32 v9, v92 offset:32")
    a("s_add_u32 s81, s81, s80")
    a("s_mov_b32 s36, 1")
    a("s_branch K3_TAILDONE")
    a.label("K3_TAILDESC")
    a("s_mov_b32 s36, 8")
    a.label("K3_TLOOP")
    a("v_cmp_lt_u32 vcc, s36, v85")
    a("s_cbranch_vccz K3_TAILDESCDONE")
    a("s_lshl_b32 s80, s36, 4")
    a("v_subrev_u32 v88, s80, v84")
    a("v_min_u32 v88, 16, v88")
    a("v_lshl_add_u32 v88, v88, 22, v86")
    a("s_sub_u32 s80, s36, 8")
    a("v_add_u32 v89, s80, v91")
    a("v_lshlrev_b32 v89, 2, v89")
    a("s_mov_b64 exec, vcc")
    a(f"ds_write_b32 v89, v88 offset:{DESC}")
    a("s_mov_b64 exec, -1")
    a("s_add_u32 s36, s36, 1")
    a("s_branch K3_TLOOP")
    a.label("K3_EPI")
    a("s_and_saveexec_b64 s[38:39], vcc")
    a("s_cbranch_execz K3_END")
    a("ds_read_b128 v[24:27], v11")
    a("ds_read_b128 v[28:31], v11 offset:16")
    for q in range(4):
        a(f"ds_read_b128 {vr(48+4*q,4)}, v10 offset:{256+16*q}")
        a(f"ds_read_b128 {vr(64+4*q,4)}, v10 offset:{768+16*q}")
    a(f"v_add_u32 v8, s{sNODE0}, v16")
    a("v_lshlrev_b32 v8, 7, v8")
    a("v_lshl_add_u32 v8, v17, 4, v8")
    a("s_mov_b32 s80, 0x358637bd")
    a("s_waitcnt lgkmcnt(0)")
    for i in range(8): a(f"v_cvt_f32_f64 v{32+i}, {vr(48+2*i,2)}")
    for i in range(8): a(f"v_cvt_f32_f64 v{40+i}, {vr(64+2*i,2)}")
    for i in range(8): a(f"v_add_f32 v{32+i}, s80, v{32+i}")
    for i in range(8): a(f"v_rcp_f32 v{32+i}, v{32+i}")
    a("s_nop 0")
    for i in range(8): a(f"v_fma_f32 v{24+i}, v{40+i}, v{32+i}, v{24+i}")
    for i in range(8): a(f"v_max_f32 v{24+i}, 0, v{24+i}")
    for i in range(4):
        a(f"v_lshlrev_b32 v40, 16, v{XEPI+i}")
        a(f"v_and_b32 v41, 0xffff0000, v{XEPI+i}")
        a(f"v_add_f32 v{24+2*i}, v40, v{24+2*i}")
        a(f"v_add_f32 v{25+2*i}, v41, v{25+2*i}")
    for i in range(4):
        a(f"v_cvt_pk_bf16_f32 v{44+i}, v{24+2*i}, v{25+2*i}")
    a(f"buffer_store_dwordx4 v[44:47], v8, {sr(sOUT,4)}, 0 offen")
    if STAMP:
        a("s_waitcnt vmcnt(0)")
        stamp("end"); stamp("rt1")
        a("v_and_b32 v9, 63, v0")
        a("v_cmp_eq_u32 vcc, 0, v9")
        a("s_and_b64 exec, exec, vcc")
        a("s_cbranch_execz K3_END")
        a(f"s_mov_b32 s{sREC+2}, {WS_STAMP+256*8*64}")
        a(f"s_lshl_b32 s80, s2, 3")
        a(f"s_add_u32 s80, s80, s{sWAVE}")
        a(f"s_lshl_b32 s80, s80, 6")
        a(f"s_add_u32 s80, s80, {WS_STAMP}")
        a("v_mov_b32 v8, s80")
        for i in range(len(STAMP)):
            a(f"v_mov_b32 v16, s{88+2*i}")
            a(f"v_mov_b32 v17, s{89+2*i}")
            a(f"buffer_store_dwordx2 v[16:17], v8, {sr(sREC,4)}, 0 offen offset:{8*i}")
            a("s_nop 1")
    a.label("K3_END")
    a("s_endpgm")
    return a.text(), kdesc(name, 256, 102, 168)
```

```python
from asmlib import *
N=12500; E=800000; CH=3125; BN=49
WS_SLOTS=0; WS_COMPACT=0x800000; WS_W=0xC00000
K1_LINES=0; K1_CNT=32768; K1_FLAG=32768+1024; K1_START=32768+2048; K1_LDS=32768+4096

import os
STAMP1=os.environ['STAMP1'].split(',') if os.environ.get('STAMP1') else False
WS_STAMP1=0xE00000
def gen_k1(name="bucket_kernel"):
    a=Asm()
    def stamp(nm):
        if STAMP1 and nm in STAMP1:
            i=STAMP1.index(nm)
            a(f"s_mem{'real' if nm.startswith('rt') else ''}time s[{48+2*i}:{49+2*i}]")
            a("s_waitcnt lgkmcnt(0)")
    a.raw(f".globl {name}\n.p2align 8\n.type {name},@function\n{name}:")
    a("s_cmp_gt_u32 s2, 256")
    a("s_cbranch_scc1 K1_END")
    stamp("start"); stamp("rt0")
    a("s_load_dwordx4 s[4:7], s[0:1], 16")
    a("s_load_dwordx2 s[8:9], s[0:1], 88")
    a("s_cmp_eq_u32 s2, 256")
    a("s_cbranch_scc1 K1_WEIGHTS")
    a.c("zero LDS lines + counters")
    a("""
    v_lshlrev_b32 v1, 4, v0
    v_mov_b32 v4, 0
    v_mov_b32 v5, 0
    v_mov_b32 v6, 0
    v_mov_b32 v7, 0
    v_lshlrev_b32 v2, 2, v0
    ds_write_b128 v1, v[4:7]
    ds_write_b128 v1, v[4:7] offset:16384
    """)
    a(f"ds_write_b32 v2, v4 offset:{K1_CNT}")
    a("s_mul_i32 s10, s2, 12500")
    a("s_waitcnt lgkmcnt(0)")
    stamp("karg")
    a.c("SRDs: dst s[12:15], src s[16:19], ws s[20:23]")
    a("""
    s_add_u32 s12, s6, s10
    s_addc_u32 s13, s7, 0
    s_and_b32 s13, s13, 0xffff
    s_mov_b32 s14, 12500
    s_mov_b32 s15, 0x20000
    s_add_u32 s16, s4, s10
    s_addc_u32 s17, s5, 0
    s_and_b32 s17, s17, 0xffff
    s_mov_b32 s18, 12500
    s_mov_b32 s19, 0x20000
    buffer_load_dwordx4 v[8:11], v1, s[12:15], 0 offen
    buffer_load_dwordx4 v[12:15], v1, s[16:19], 0 offen
    """)
    a.srd(20, 8, 9, WS_COMPACT + 256*12500)
    a("s_barrier")
    a.c("eloc_k = 4*tid+k ; valid masks s[24+2k:25+2k]")
    a("v_lshlrev_b32 v3, 2, v0")
    for k in range(4):
        a(f"v_add_u32 v{16+k}, {k}, v3")
    for k in range(4):
        a(f"v_cmp_gt_u32 s[{24+2*k}:{25+2*k}], s14, v{16+k}") if False else None
    a("s_movk_i32 s11, 3125")
    for k in range(4):
        a(f"v_cmp_gt_u32 s[{24+2*k}:{25+2*k}], s11, v{16+k}")
    a("v_mov_b32 v40, 1")
    a("s_movk_i32 s10, 21400")
    stamp("bar1")
    a("s_waitcnt vmcnt(1)")
    stamp("dst")
    for k in range(4):
        a(f"v_mul_u32_u24 v{20+k}, s10, v{8+k}")
    for k in range(4):
        a(f"v_lshrrev_b32 v{20+k}, 20, v{20+k}")
    for k in range(4):
        a(f"v_mul_u32_u24 v{24+k}, 49, v{20+k}")
        a(f"v_lshlrev_b32 v{28+k}, 2, v{20+k}")
    for k in range(4):
        a(f"s_mov_b64 exec, s[{24+2*k}:{25+2*k}]")
        a(f"ds_add_rtn_u32 v{32+k}, v{28+k}, v40 offset:{K1_CNT}")
    a("s_mov_b64 exec, -1")
    for k in range(4):
        a(f"v_sub_u32 v{24+k}, v{8+k}, v{24+k}")
        a(f"v_lshl_add_u32 v{16+k}, v{16+k}, 6, v{24+k}")
    a("s_waitcnt vmcnt(0)")
    for k in range(4):
        a(f"v_lshl_add_u32 v{16+k}, v{12+k}, 18, v{16+k}")
        a(f"v_add_u32 v{16+k}, 1, v{16+k}")
        a(f"v_lshlrev_b32 v{24+k}, 7, v{20+k}")
    a("s_waitcnt lgkmcnt(0)")
    for k in range(4):
        a(f"v_lshl_add_u32 v{24+k}, v{32+k}, 2, v{24+k}")
    a("s_mov_b64 s[34:35], 0")
    for k in range(4):
        a(f"v_cmp_gt_u32 vcc, 32, v{32+k}")
        a(f"s_and_b64 exec, vcc, s[{24+2*k}:{25+2*k}]")
        a(f"ds_write_b32 v{24+k}, v{16+k}")
        a(f"s_andn2_b64 s[36:37], s[{24+2*k}:{25+2*k}], vcc")
        a("s_or_b64 s[34:35], s[34:35], s[36:37]")
        a("s_mov_b64 exec, -1")
    a.c("any overflow in this wave -> set flag")
    a("s_cmp_eq_u64 s[34:35], 0")
    a("s_cbranch_scc1 K1_NOFLAG")
    a(f"v_mov_b32 v41, {K1_FLAG}")
    a("ds_write_b32 v41, v40")
    a.label("K1_NOFLAG")
    a("s_waitcnt lgkmcnt(0)")
    stamp("scat")
    a("s_barrier")
    stamp("bar2")
    a(f"v_mov_b32 v41, {K1_FLAG}")
    a("ds_read_b32 v42, v41")
    a("ds_read_b128 v[44:47], v1")
    a("ds_read_b128 v[48:51], v1 offset:16384")
    a.c("global offsets for copy-out: line b = (i*1024+tid)>>3")
    a("""
    v_lshrrev_b32 v52, 3, v0
    v_and_b32 v53, 7, v0
    v_lshlrev_b32 v53, 4, v53
    v_add_u32 v54, s2, v52
    v_and_b32 v55, 255, v54
    v_lshl_add_u32 v55, v55, 7, v53
    v_lshl_add_u32 v55, v52, 15, v55
    v_add_u32 v54, 128, v54
    v_and_b32 v54, 255, v54
    v_lshl_add_u32 v54, v54, 7, v53
    v_add_u32 v52, 128, v52
    v_lshl_add_u32 v54, v52, 15, v54
    """)
    a("s_waitcnt lgkmcnt(2)")
    a("v_readfirstlane_b32 s10, v42")
    a("s_nop 3")
    a("s_cmp_lg_u32 s10, 0")
    a("s_cbranch_scc1 K1_SLOW")
    a.label("K1_COPY")
    a("s_waitcnt lgkmcnt(0)")
    fl=os.environ.get('K1ST','')
    a(f"buffer_store_dwordx4 v[44:47], v55, s[20:23], 0 offen {fl}")
    a(f"buffer_store_dwordx4 v[48:51], v54, s[20:23], 0 offen {fl}")
    if STAMP1:
        a("s_waitcnt vmcnt(0)")
        stamp("end"); stamp("rt1")
        a("v_and_b32 v9, 63, v0")
        a("v_cmp_eq_u32 vcc, 0, v9")
        a("s_and_b64 exec, exec, vcc")
        a(f"s_mov_b32 s22, {WS_STAMP1+256*16*64}")
        a("v_lshrrev_b32 v8, 6, v0")
        a("v_lshlrev_b32 v8, 6, v8")
        a("s_lshl_b32 s10, s2, 10")
        a(f"s_add_u32 s10, s10, {WS_STAMP1}")
        a("v_add_u32 v8, s10, v8")
        for i in range(len(STAMP1)):
            a(f"v_mov_b32 v16, s{48+2*i}")
            a(f"v_mov_b32 v17, s{49+2*i}")
            a(f"buffer_store_dwordx2 v[16:17], v8, s[20:23], 0 offen offset:{8*i}")
            a("s_nop 1")
    a("s_endpgm")
    a.label("K1_SLOW")
    a.c("exclusive prefix of cnt for thread t<256 (brute force)")
    a("s_waitcnt lgkmcnt(0)")
    a("v_mov_b32 v56, 0")
    a("s_mov_b32 s10, 0")
    a.label("K1_SLOOP")
    a(f"s_lshl_b32 s11, s10, 2")
    a(f"s_add_u32 s11, s11, {K1_CNT}")
    a("v_mov_b32 v57, s11")
    a("ds_read_b32 v58, v57")
    a("v_cmp_lt_u32 vcc, s10, v0")
    a("s_waitcnt lgkmcnt(0)")
    a("s_nop 0")
    a("v_cndmask_b32 v58, 0, v58, vcc")
    a("v_add_u32 v56, v56, v58")
    a("s_add_u32 s10, s10, 1")
    a("s_cmp_lt_u32 s10, 256")
    a("s_cbranch_scc1 K1_SLOOP")
    a("v_cmp_gt_u32 vcc, 0x100, v0")
    a("s_and_saveexec_b64 s[38:39], vcc")
    a("s_cbranch_execz K1_S1")
    a(f"ds_write_b32 v2, v56 offset:{K1_START}")
    a(f"ds_read_b32 v57, v2 offset:{K1_CNT}")
    a("s_waitcnt lgkmcnt(0)")
    a("v_cmp_lt_u32 vcc, 32, v57")
    a("s_and_b64 exec, exec, vcc")
    a("s_cbranch_execz K1_S1")
    a.c("overflowed line t := marker, zeros")
    a("v_lshlrev_b32 v58, 7, v0")
    for i in range(8):
        a(f"ds_write_b128 v58, v[4:7] offset:{16*i}")
    a("v_lshlrev_b32 v59, 6, v56")
    a("v_lshl_add_u32 v59, v57, 18, v59")
    a("v_or_b32 v59, 63, v59")
    a("ds_write_b32 v58, v59")
    a.label("K1_S1")
    a("s_mov_b64 exec, -1")
    a("s_waitcnt lgkmcnt(0)")
    a("s_barrier")
    a.c("records of overflowed buckets -> compact list")
    a("s_mul_i32 s10, s2, 12500")
    a(f"s_add_u32 s10, s10, {WS_COMPACT}")
    for k in range(4):
        lab=a.newlabel("K1_SK")
        a(f"s_mov_b64 exec, s[{24+2*k}:{25+2*k}]")
        a(f"s_cbranch_execz {lab}")
        a(f"ds_read_b32 v57, v{28+k} offset:{K1_CNT}")
        a(f"ds_read_b32 v58, v{28+k} offset:{K1_START}")
        a("s_waitcnt lgkmcnt(0)")
        a("v_cmp_lt_u32 vcc, 32, v57")
        a("s_and_b64 exec, exec, vcc")
        a(f"s_cbranch_execz {lab}")
        a(f"v_add_u32 v58, v58, v{32+k}")
        a("v_lshlrev_b32 v58, 2, v58")
        a(f"buffer_store_dword v{16+k}, v58, s[20:23], s10 offen")
        a.label(lab)
        a("s_mov_b64 exec, -1")
    a("ds_read_b128 v[44:47], v1")
    a("ds_read_b128 v[48:51], v1 offset:16384")
    a("s_branch K1_COPY")
    a.label("K1_WEIGHTS")
    a("s_load_dwordx8 s[12:19], s[0:1], 32")
    a("s_load_dwordx2 s[20:21], s[0:1], 64")
    a("""
    v_lshrrev_b32 v1, 6, v0
    v_and_b32 v2, 63, v0
    v_and_b32 v3, 31, v2
    v_lshrrev_b32 v4, 5, v2
    """)
    a("v_readfirstlane_b32 s22, v1")
    a("s_waitcnt lgkmcnt(0)")
    a.srd(28, 8, 9, WS_W + 34*1024)
    for r in range(3):
        skip=a.newlabel("K1_WSK")
        a(f"s_add_u32 s23, s22, {16*r}")
        a("s_cmp_ge_u32 s23, 34")
        a(f"s_cbranch_scc1 {skip}")
        done=a.newlabel("K1_WSEL")
        for (lo,hi,base,khm,size) in ((0,8,14,32,8192),(8,16,20,32,8192),(16,18,16,8,2048),(18,26,12,32,8192),(26,34,18,32,8192)):
            nxt=a.newlabel("K1_WN")
            a(f"s_cmp_ge_u32 s23, {hi}")
            a(f"s_cbranch_scc1 {nxt}")
            a(f"s_mov_b32 s24, s{base}")
            a(f"s_and_b32 s25, s{base+1}, 0xffff")
            a(f"s_mov_b32 s26, {size}")
            a(f"s_mov_b32 s27, 0x20000")
            a(f"s_sub_u32 s33, s23, {lo}")
            a(f"s_mov_b32 s34, {khm*128}")
            a(f"s_branch {done}")
            a.label(nxt)
        a("s_endpgm")
        a.label(done)
        a("""
        s_lshr_b32 s35, s33, 1
        s_and_b32 s36, s33, 1
        s_lshl_b32 s35, s35, 10
        s_lshl_b32 s36, s36, 6
        s_add_u32 s35, s35, s36
        v_mul_lo_u32 v5, v4, s34
        v_lshl_add_u32 v5, v3, 1, v5
        """)
        for i in range(8):
            a(f"buffer_load_ushort v{8+i}, v5, s[24:27], s35 offen offset:{128*i}")
        a("s_lshl_b32 s37, s23, 10")
        a(f"s_add_u32 s37, s37, {WS_W}")
        a("v_lshlrev_b32 v6, 4, v2")
        a("s_waitcnt vmcnt(0)")
        a.c("pieces 0..7 (Wb) and 16,17 (Wc) are pre-scaled by -log2(e)")
        sc=a.newlabel("K1_WSC"); dn=a.newlabel("K1_WDN")
        a("s_cmp_lt_u32 s23, 8")
        a(f"s_cbranch_scc1 {sc}")
        a("s_sub_u32 s38, s23, 16")
        a("s_cmp_lt_u32 s38, 2")
        a(f"s_cbranch_scc1 {sc}")
        for i in range(4):
            a(f"v_lshl_or_b32 v{16+i}, v{9+2*i}, 16, v{8+2*i}")
        a(f"s_branch {dn}")
        a.label(sc)
        a("s_mov_b32 s38, 0xbfb8aa3b")
        for i in range(8):
            a(f"v_lshlrev_b32 v{8+i}, 16, v{8+i}")
            a(f"v_mul_f32 v{8+i}, s38, v{8+i}")
        for i in range(4):
            a(f"v_cvt_pk_bf16_f32 v{16+i}, v{8+2*i}, v{9+2*i}")
        a.label(dn)
        a("buffer_store_dwordx4 v[16:19], v6, s[28:31], s37 offen")
        a("s_nop 1")
        a.label(skip)
    a.label("K1_END")
    a("s_endpgm")
    return a.text(), kdesc(name, 64, 64, 64)
```

```python
from asmlib import *
from k1 import WS_SLOTS, WS_COMPACT, WS_W
import os
N=12500; E=800000
NREC=1280
NTILE=154
OVF=0; TCTR=4; DESC=2144; LIST_S=3392; LIST_E=LIST_S+NTILE*64; NODE=LIST_E+NTILE*128
STAGE=(NODE+50*NREC+127)//128*128; K3_LDS=STAGE+65536
TROW=44
TAB=STAGE; XD=STAGE+4096
DESCN=(LIST_S-DESC)//16
LISTN=NTILE*192//16
assert DESC+(NTILE+1)*8<=LIST_S and K3_LDS<=163840, K3_LDS
assert LIST_E<65536
MAXG=2*NTILE-1
def wmain_addr(p):
    return STAGE+(3+(p>>2))*8192+4096+(p&3)*1024
def wau_addr(q):
    return STAGE+(4+(q>>2))*8192+(q&3)*1024
G=[16,48]; H=[32,64]; XX=[80,96]; AX=[112,116]; BX=[120,124]; EE=[128,132]
X=80; MK=96
XRD=136; CCH=140; KH16=144; LOFF=145; AS=146; AE=147; AD=148; VM=149
SRC4=150; EID=152; VD=153; NODEA=154; KM=155; NODEB=[157,159]; XEPI=160; RECO=164
CL2E=2; CONE=14; DEN=4; NUM=6; LOF4=1
LS=164; LE=165; LD=166; VCT=167
VONE=13
WB=0; WV=32; WC=64; AU=72
sXB=12; sEA=16; sWS=20; sOUT=24; sWAVE=28; sNODE0=29; sSTEP=30; sNT=31; sMODE=32; sST0=33; sST1=34; s128=35
sREC=40; sM=48; sT1=44; sT2=45; sT3=46; sMOREC=47
STAMP=False
X_=set(os.environ.get('EXP','').split(','))
WS_STAMP=0xD00000

def mfma(d, a_, b_, c, bv=False):
    cs = "0" if c is None else vr(c,16)
    return f"v_mfma_f32_32x32x16_bf16 {vr(d,16)}, {vr(a_,4)}, {vr(b_,4) if bv else ar(b_,4)}, {cs}"

def valu_block(blk):
    g=G[blk]; h=H[blk]
    ex=[f"v_exp_f32 v{g+i}, v{g+i}" for i in range(16)]
    pk_a=[f"v_pk_add_f32 {vr(g+2*i,2)}, {vr(g+2*i,2)}, {vr(CONE,2)}" for i in range(8)]
    rc=[f"v_rcp_f32 v{g+i}, v{g+i}" for i in range(16)]
    acc=[f"v_pk_add_f32 {vr(DEN,2)}, {vr(g,2)}, {vr(g+2,2)}",
         f"v_pk_mul_f32 {vr(NUM,2)}, {vr(g,2)}, {vr(h,2)}",
         f"v_pk_fma_f32 {vr(NUM,2)}, {vr(g+2,2)}, {vr(h+2,2)}, {vr(NUM,2)}"]
    for i in range(2,8):
        acc.append(f"v_pk_add_f32 {vr(DEN,2)}, {vr(g+2*i,2)}, {vr(DEN,2)}")
        acc.append(f"v_pk_fma_f32 {vr(NUM,2)}, {vr(g+2*i,2)}, {vr(h+2*i,2)}, {vr(NUM,2)}")
    return ex,pk_a,rc,acc

def chain(blk, b):
    g=G[blk]; h=H[blk]; x=XX[b]
    o=[mfma(g, AX[b], BX[blk], None, bv=True), mfma(g, EE[b], WC+4*blk, g)]
    o+=[mfma(g, x+4*j, WB+4*(2*j+blk), g) for j in range(4)]
    o+=[mfma(h, x+4*j, WV+4*(2*j+blk), None if j==0 else h) for j in range(4)]
    return o

def addr_calc(b):
    return [f"v_mad_u32_u16 v8, v{SRC4}, s{s128}, v{CCH}",
            f"v_mad_u32_u16 v9, v{SRC4}, s{s128}, v{CCH+1} op_sel:[1,0,0,0]",
            f"v_mad_u32_u16 v10, v{SRC4+1}, s{s128}, v{CCH+2}",
            f"v_mad_u32_u16 v11, v{SRC4+1}, s{s128}, v{CCH+3} op_sel:[1,0,0,0]",
            f"v_lshl_add_u32 v12, v{EID}, 5, v{KH16}" if 'esame' not in X_ else f"v_mov_b32 v12, v{KH16}"]
def pad_flag(b):
    return f"v_and_b32_sdwa v{AX[b]+1}, v{EID}, v{KM} dst_sel:DWORD dst_unused:UNUSED_PAD src0_sel:WORD_1 src1_sel:DWORD"
def set_m0(b):
    return f"s_mov_b32 m0, s{sST0 if b==0 else sST1}"
def vmem_x():
    return [f"buffer_load_dwordx4 v{8+i}, {sr(sXB,4)}, 0 offen offset:{1024*i} lds" for i in range(4)]
def vmem_e(b):
    return f"buffer_load_dwordx4 {vr(EE[b],4)}, v12, {sr(sEA,4)}, 0 offen"
def issue_loads(b):
    return [set_m0(b)]+addr_calc(b)+[pad_flag(b)]+vmem_x()+[vmem_e(b)]

def list_addr(sT):
    return [f"s_lshl_b32 s80, s{sT}, 6", f"s_lshl_b32 s81, s{sT}, 7",
            f"v_add_u32 v{AS}, s80, v{LS}", f"v_add_u32 v{AE}, s81, v{LE}"]
def desc_addr(sT):
    return [f"s_lshl_b32 s80, s{sT}, 3", f"v_add_u32 v{AD}, s80, v{LD}"]
def read_list():
    return [f"ds_read_b64 {vr(SRC4,2)}, v{AS} offset:{LIST_S}",
            f"ds_read_b32 v{EID}, v{AE} offset:{LIST_E}"]
def fetch_tile():
    return ["s_mov_b64 exec, 1", f"ds_add_rtn_u32 v{VCT}, v{LOF4}, v{VONE} offset:{TCTR}", "s_mov_b64 exec, -1"]

def node_addr(bn):
    return [f"v_add_u32_sdwa v{NODEA}, v{VD}, v{LOFF} dst_sel:DWORD dst_unused:UNUSED_PAD src0_sel:WORD_0 src1_sel:DWORD",
            f"v_add_u32 v{NODEB[bn]}, v{NODEA}, v{LOF4}"]
def read_x(bn):
    return [f"ds_read_b128 {vr(XX[bn]+4*j,4)}, v{XRD+j} offset:{4096*bn}" for j in range(4)]
def read_a(blk):
    return f"ds_read_b32 v{BX[blk]}, v{NODEA} offset:{128*blk}"

def flush(blk,b):
    return [f"v_add_f32 v8, v{DEN}, v{DEN+1}", f"v_add_f32 v9, v{NUM}, v{NUM+1}",
            f"v_cvt_f64_f32 v[10:11], v8",
            f"v_cvt_f64_f32 v[8:9], v9",
            f"ds_add_f64 v{NODEB[b]}, v[10:11] offset:{256+256*blk}",
            f"ds_add_f64 v{NODEB[b]}, v[8:9] offset:{768+256*blk}"]

def mix(trans, groups):
    o=[]; ti=0
    for pre,n in groups:
        o+=pre; o+=trans[ti:ti+n]; ti+=n
    assert ti==len(trans), (ti,len(trans))
    return o

def filt(o):
    if 'nomfma' in X_: o=[x for x in o if 'mfma' not in x]
    if 'nolds' in X_: o=[x for x in o if not x.startswith('ds_read')]
    return o

def weave(main, fill):
    o=[]
    for i,x in enumerate(main):
        o+=fill.get(i,[]); o.append(x)
    o+=fill.get(len(main),[])
    return o
def phase(trans, mf, last_pad):
    o=[]; ti=0
    for k in range(5):
        o.append(mf[k]); n=3 if k<4 else 4
        o+=trans[ti:ti+n]; ti+=n
    return o

def tile_body(a, b):
    bn=b^1
    ex,pk_a,rc,acc=valu_block(0)
    mf=chain(1,b)
    ac=addr_calc(b); vx=vmem_x(); da=desc_addr(sT1); na=node_addr(bn); rx=read_x(bn)
    if 'novm' in X_: vx=["s_nop 0"]*4
    ve=vmem_e(b) if 'novm' not in X_ else "s_nop 0"
    a.c(f"---- P0 parity {b}")
    a("s_waitcnt lgkmcnt(2)")
    p=phase(ex,mf[:5],0)
    o=weave(p,{1:[set_m0(b),da[0]]+fetch_tile(), 2:[], 5:[],
               9:[], 21:[da[1],ac[0],f"ds_read_b32 v{VD}, v{AD} offset:{DESC}"]})
    o+=ac[1:2]
    o+=weave(pk_a,{1:[],8:[]})
    p=phase(rc,mf[5:],0)
    o+=weave(p,{})
    tail=[ac[2],ac[3],ac[4],pad_flag(b)]
    o+=tail
    w0=("s_waitcnt vmcnt(0) lgkmcnt(0)" if 'nowait' not in X_ else "s_waitcnt lgkmcnt(0)")
    rfl=f"v_readfirstlane_b32 s{sT3}, v{VCT}"
    accw=weave(acc,{0:[w0]+vx[:1], 1:[rx[0]], 2:vx[1:2], 3:[rx[1]], 4:vx[2:3], 5:[rx[2]], 6:vx[3:4], 7:[rx[3]], 8:[ve]})
    o+=accw
    o+=na+[rfl]+[read_a(0)]
    o+=(flush(0,b) if 'noflush' not in X_ else ["s_nop 0","s_nop 0"])
    for s in filt(o): a(s)
    ex,pk_a,rc,acc=valu_block(1)
    mf=chain(0,bn)
    la=list_addr(sT3)
    a.c(f"---- P1 parity {b}")
    p=phase(ex,mf[:5],0)
    o=["s_waitcnt lgkmcnt(2)"]+weave(p,{1:la[:2]+[read_a(1)], 21:la[2:]})
    o+=weave(pk_a,{2:read_list()[:1],4:read_list()[1:]})
    p=phase(rc,mf[5:],0)
    o+=p
    o+=["s_nop 0"]
    o+=acc + (flush(1,b) if 'noflush' not in X_ else ["s_nop 0","s_nop 0"])
    for s in filt(o): a(s)
    a.c("rotate tile ring; continue while next tile < NT")
    a(f"s_cmp_lt_u32 s{sT1}, s{sNT}")
    a(f"s_mov_b32 s{sT1}, s{sT2}")
    a(f"s_mov_b32 s{sT2}, s{sT3}")

def pack_a(a):
    a("s_mov_b32 s81, 0xbfb8aa3b")
    for r in range(16):
        a(f"v_accvgpr_read_b32 v{64+r}, a{AU+r}")
    for r in range(16):
        a(f"v_mul_f32 v{64+r}, s81, v{64+r}")
    for r in range(16):
        a(f"v_cvt_pk_bf16_f32 v{32+r}, v{64+r}, v{64+r}")
    for r in range(16):
        a(f"v_lshlrev_b32 v{32+r}, 16, v{32+r}")
    for r in range(16):
        a(f"v_sub_f32 v{32+r}, v{64+r}, v{32+r}")
    for r in range(16):
        a(f"v_cvt_pk_bf16_f32 v{64+r}, v{64+r}, v{32+r}")

def node_zero(a):
    a("v_mov_b32 v4, 0\nv_mov_b32 v5, 0\nv_mov_b32 v6, 0\nv_mov_b32 v7, 0")
    a("v_lshrrev_b32 v8, 6, v0")
    a(f"v_mul_u32_u24 v8, {NREC}, v8")
    a("v_and_b32 v9, 63, v0")
    a("v_lshl_add_u32 v8, v9, 4, v8")
    a(f"v_add_u32 v8, {NODE+256}, v8")
    for i in range(7):
        if i==6:
            a("v_cmp_gt_u32 vcc, 0x80, v0")
            a("s_and_saveexec_b64 s[38:39], vcc")
        a(f"ds_write_b128 v8, v[4:7] offset:{8*NREC*i}")
        if i==6: a("s_mov_b64 exec, s[38:39]")
    a("v_lshlrev_b32 v9, 2, v0")
    a("v_cmp_gt_u32 vcc, 64, v0")
    a("s_and_saveexec_b64 s[38:39], vcc")
    a(f"ds_write_b32 v9, v4 offset:{NODE}")
    a("s_mov_b64 exec, s[38:39]")

def gen_k3(name):
    a=Asm()
    def stamp(nm):
        if STAMP and nm in STAMP:
            i=STAMP.index(nm)
            a(f"s_mem{'real' if nm.startswith('rt') else ''}time s[{88+2*i}:{89+2*i}]")
            a("s_waitcnt lgkmcnt(0)")
    def rec_offsets():
        a.c("record offsets: p=(64i+(t>>3)+b)&255 ; off=b*32768+p*128+(t&7)*16")
        a("""
        v_lshrrev_b32 v8, 3, v0
        v_and_b32 v9, 7, v0
        v_lshlrev_b32 v9, 4, v9
        s_lshl_b32 s37, s2, 15
        v_add_u32 v9, s37, v9
        v_add_u32 v10, s2, v8
        """)
        for i in range(4):
            a(f"v_add_u32 v11, {64*i}, v10")
            a("v_and_b32 v11, 255, v11")
            a(f"v_lshl_add_u32 v{RECO+i}, v11, 7, v9")
        a("s_movk_i32 s37, 3125")
        a("v_mul_u32_u24 v3, s37, v8")
    a.raw(f".globl {name}\n.p2align 8\n.type {name},@function\n{name}:")
    a("s_cmp_ge_u32 s2, 256")
    a("s_cbranch_scc1 K3_END")
    stamp("start"); stamp("rt0")
    a("s_load_dwordx2 s[10:11], s[0:1], 88")
    a("s_load_dwordx4 s[4:7], s[0:1], 0")
    a("s_load_dwordx2 s[8:9], s[0:1], 72")
    a("v_lshrrev_b32 v1, 6, v0")
    a("v_and_b32 v13, 63, v0")
    a(f"v_readfirstlane_b32 s{sWAVE}, v1")
    a(f"s_mul_i32 s{sNODE0}, s2, 49")
    a(f"s_movk_i32 s{s128}, 128")
    a(f"s_mov_b32 s{sMODE}, 0")
    a(f"s_mov_b32 s{sSTEP}, 200000")
    rec_offsets()
    a.c("DMA chunk constants: lane=(p8,cpos): cA=(cpos^(p8>>1))*16 ; i odd: ^64 ; + 3072-1024*i")
    a("""
    v_lshrrev_b32 v10, 3, v13
    v_and_b32 v11, 7, v13
    v_lshrrev_b32 v12, 1, v10
    v_xor_b32 v11, v11, v12
    v_lshlrev_b32 v11, 4, v11
    """)
    for i in range(4):
        if i%2==1:
            a("v_xor_b32 v12, 64, v11"); a(f"v_add_u32 v{CCH+i}, {3072-1024*i}, v12")
        else:
            a(f"v_add_u32 v{CCH+i}, {3072-1024*i}, v11")
    a.c("x_dst DMA address: (node0+8v+p8)*128 + (cA ^ 64*(v&1)) + 3072")
    a(f"s_and_b32 s37, s{sWAVE}, 1")
    a("s_lshl_b32 s37, s37, 6")
    a("v_xor_b32 v11, s37, v11")
    a(f"s_lshl_b32 s38, s{sWAVE}, 3")
    a(f"s_add_u32 s38, s38, s{sNODE0}")
    a("v_add_u32 v10, s38, v10")
    a("v_lshl_add_u32 v10, v10, 7, v11")
    a(f"v_add_u32 v{EE[0]}, 3072, v10")
    a(f"v_lshlrev_b32 v{EE[0]+1}, 4, v13")
    a("v_lshrrev_b32 v8, 3, v0")
    a(f"v_add_u32 v8, s{sNODE0}, v8")
    a("v_lshlrev_b32 v8, 7, v8")
    a("v_and_b32 v9, 7, v0")
    a("v_lshl_add_u32 v8, v9, 4, v8")
    a(f"v_add_u32 v{EE[0]+2}, 3072, v8")
    a(f"s_lshl_b32 s80, s{sWAVE}, 13")
    a(f"s_add_u32 s{sST0}, s80, {STAGE}")
    a(f"s_add_u32 s{sST1}, s{sST0}, 4096")
    a.c("table (with histogram) zero + tile counter, then barrier A right after the record loads")
    a("v_mov_b32 v4, 0\nv_mov_b32 v5, 0\nv_mov_b32 v6, 0\nv_mov_b32 v7, 0")
    a("v_lshlrev_b32 v8, 4, v0")
    a(f"v_add_u32 v9, {TAB}, v8")
    a(f"v_cmp_gt_u32 vcc, {64*TROW//16}, v0")
    a("s_and_saveexec_b64 s[38:39], vcc")
    a("ds_write_b128 v9, v[4:7]")
    a("s_mov_b64 exec, s[38:39]")
    a(f"v_mov_b32 v9, {TCTR}")
    a("v_mov_b32 v8, 16")
    a("ds_write_b32 v9, v8")
    a("s_waitcnt lgkmcnt(0)")
    stamp("karg")
    a.c("---- SRDs + prologue loads")
    a.srd(sREC, 10, 11, WS_COMPACT)
    for i in range(4):
        a(f"buffer_load_dwordx4 {vr(16+4*i,4)}, v{RECO+i}, {sr(sREC,4)}, 0 offen")
    a("s_barrier")
    a(f"s_sub_u32 s{sXB}, s4, 3072")
    a(f"s_subb_u32 s{sXB+1}, s5, 0")
    a(f"s_and_b32 s{sXB+1}, s{sXB+1}, 0xffff")
    a(f"s_mov_b32 s{sXB+2}, {N*128+3072}")
    a(f"s_mov_b32 s{sXB+3}, 0x20000")
    a.srd(sWS, 10, 11, WS_W+34*1024)
    a.srd(sEA, 6, 7, E*32)
    a.srd(sOUT, 8, 9, N*128)
    stamp("issued")
    a("v_mov_b32 v4, 0")
    a(f"v_mov_b32 v8, {OVF}")
    a("ds_write_b32 v8, v4")
    a.c("---- per-lane constants for main loop")
    a("""
    v_and_b32 v8, 31, v13
    v_lshrrev_b32 v9, 5, v13
    v_bfe_u32 v10, v13, 1, 3
    v_lshlrev_b32 v11, 2, v9
    v_xor_b32 v10, v10, v11
    v_lshlrev_b32 v11, 7, v8
    """)
    a(f"v_add_u32 v11, s{sST0}, v11")
    for j in range(4):
        a(f"v_xor_b32 v12, {j}, v10")
        a(f"v_lshl_add_u32 v{XRD+j}, v12, 4, v11")
    a(f"v_lshlrev_b32 v{KH16}, 4, v9")
    a(f"v_lshlrev_b32 v{LOF4}, 2, v8")
    a(f"v_add_u32 v{LOFF}, {NODE}, v{LOF4}")
    a.c("ext-step operands: A side = group indicator / pad flag, B side = A entry / BIG")
    a("v_bfe_u32 v10, v8, 2, 1")
    a("v_cmp_eq_u32 vcc, v10, v9")
    a("v_mov_b32 v11, 0x3f803f80")
    a("v_mov_b32 v12, 0")
    a(f"v_cndmask_b32 v{AX[0]}, v12, v11, vcc")
    a(f"v_mov_b32 v{AX[1]}, v{AX[0]}")
    a("v_cmp_eq_u32 vcc, 0, v9")
    a("v_mov_b32 v11, 0x3f80")
    for q in (0,1):
        a(f"v_mov_b32 v{AX[q]+1}, 0"); a(f"v_mov_b32 v{AX[q]+2}, 0"); a(f"v_mov_b32 v{AX[q]+3}, 0")
        a(f"v_mov_b32 v{BX[q]+1}, 0x7149"); a(f"v_mov_b32 v{BX[q]+2}, 0"); a(f"v_mov_b32 v{BX[q]+3}, 0")
    a(f"v_cndmask_b32 v{KM}, v12, v11, vcc")
    a(f"v_mov_b32 v{CONE}, 1.0")
    a(f"v_mov_b32 v{CONE+1}, 1.0")
    def prefill(full):
        a("v_lshlrev_b32 v8, 4, v0")
        a("v_mov_b32 v4, -1\nv_mov_b32 v5, -1\nv_mov_b32 v6, -1\nv_mov_b32 v7, -1")
        for i in range((LISTN+511)//512):
            last=(i+1)*512>LISTN
            if last:
                a(f"v_cmp_gt_u32 vcc, {LISTN-i*512}, v0")
                a("s_and_saveexec_b64 s[38:39], vcc")
            a(f"ds_write_b128 v8, v[4:7] offset:{LIST_S+8192*i}")
            if last: a("s_mov_b64 exec, s[38:39]")
        a("v_mov_b32 v4, 0\nv_mov_b32 v5, 0\nv_mov_b32 v6, 0\nv_mov_b32 v7, 0")
        a(f"v_cmp_gt_u32 vcc, {DESCN}, v0")
        a("s_and_saveexec_b64 s[38:39], vcc")
        a(f"ds_write_b128 v8, v[4:7] offset:{DESC}")
        a("s_mov_b64 exec, s[38:39]")
        if full:
            a(f"v_add_u32 v9, {TAB}, v8")
            a(f"v_cmp_gt_u32 vcc, {64*TROW//16}, v0")
            a("s_and_saveexec_b64 s[38:39], vcc")
            a("ds_write_b128 v9, v[4:7]")
            a("s_mov_b64 exec, s[38:39]")
            a(f"v_mov_b32 v9, {TCTR}")
            a("v_mov_b32 v10, 16")
            a("ds_write_b32 v9, v10")
            a("s_waitcnt lgkmcnt(0)")
            a("s_barrier")
    a.c("==== first pass: prefill lists / desc (needed only after barrier B), node records zero")
    prefill(False)
    node_zero(a)
    stamp("prefill")
    a.label("K3_HIST")
    a.c("==== histogram / rank")
    a("s_waitcnt vmcnt(0)")
    stamp("rec")
    a("v_mov_b32 v8, 1")
    a(f"v_mov_b32 v10, {TROW}")
    a(f"v_mov_b32 v11, {TAB}")
    for r in range(16):
        a(f"v_and_b32 v9, 63, v{16+r}")
        a(f"v_mad_u32_u24 v{32+r}, v9, v10, v11")
        a(f"v_cmp_ne_u32 s[{sM+2*r}:{sM+2*r+1}], 0, v9")
    for r in range(16):
        a(f"s_mov_b64 exec, s[{sM+2*r}:{sM+2*r+1}]")
        a(f"ds_add_rtn_u32 v{48+r}, v{32+r}, v8 offset:40")
    a("s_mov_b64 exec, -1")
    a.c("first pass: x_dst rows / weights -> LDS, epilogue x rows")
    a(f"s_cmp_lg_u32 s{sMODE}, 0")
    a("s_cbranch_scc1 K3_NODMA")
    a(f"s_lshl_b32 s80, s{sWAVE}, 10")
    a(f"s_add_u32 m0, s80, {XD}")
    a("s_nop 0")
    a(f"buffer_load_dwordx4 v{EE[0]}, {sr(sXB,4)}, 0 offen lds")
    for r in range(5):
        skip=a.newlabel("K3_WSK")
        a(f"s_add_u32 s80, s{sWAVE}, {8*r}")
        if r==4:
            a("s_cmp_ge_u32 s80, 34")
            a(f"s_cbranch_scc1 {skip}")
        a("s_cmp_ge_u32 s80, 18")
        a("s_cselect_b32 s81, 18, 0")
        a("s_cselect_b32 s82, 0x1000, 0")
        a(f"s_add_u32 s82, s82, {STAGE+4096+3*8192}")
        a("s_sub_u32 s81, s80, s81")
        a("s_lshr_b32 s83, s81, 2")
        a("s_lshl_b32 s83, s83, 13")
        a("s_and_b32 s81, s81, 3")
        a("s_lshl_b32 s81, s81, 10")
        a("s_add_u32 s82, s82, s83")
        a("s_add_u32 m0, s82, s81")
        a("s_lshl_b32 s80, s80, 10")
        a(f"s_add_u32 s80, s80, {WS_W}")
        a(f"buffer_load_dwordx4 v{EE[0]+1}, {sr(sWS,4)}, s80 offen lds")
        if r==4: a.label(skip)
    a(f"buffer_load_dwordx4 {vr(XEPI,4)}, v{EE[0]+2}, {sr(sXB,4)}, 0 offen")
    a.label("K3_NODMA")
    a.c("eid / src extraction while the atomics are in flight")
    for i in range(1,4):
        a(f"s_mul_i32 s80, s{sSTEP}, {i}")
        a(f"v_add_u32 v{80+i}, s80, v3")
    a("v_mov_b32 v80, v3")
    for r in range(16):
        a(f"v_bfe_u32 v{64+r}, v{16+r}, 6, 12")
        a(f"v_add_u32 v{64+r}, v{64+r}, v{80+r//4}")
    a("s_waitcnt lgkmcnt(0)")
    a("s_barrier")
    stamp("hist")
    a.c("==== scan: wave v handles level j=v ; lane = d1")
    a(f"v_mad_u32_u24 v9, v13, v10, v11")
    a("ds_read_b32 v128, v9 offset:40")
    a("s_waitcnt lgkmcnt(0)")
    a(f"v_mul_u32_u24 v130, {NREC}, v13")
    a("v_readlane_b32 s87, v128, 63")
    a("v_cmp_gt_u32 vcc, 50, v13")
    a("s_nop 1")
    a("v_cndmask_b32 v128, 0, v128, vcc")
    a("v_add_u32 v129, 15, v128")
    a("v_lshrrev_b32 v129, 4, v129")
    MS=[4,6,8,10,82,84]
    a(f"s_mov_b32 s81, 0"); a("s_mov_b32 s86, 0")
    for j in range(8):
        a(f"v_cmp_lt_u32 s[4:5], {j}, v129")
        a("s_bcnt1_i32_b64 s80, s[4:5]")
        a(f"s_cmp_gt_u32 s{sWAVE}, {j}")
        a("s_cselect_b32 s36, s80, 0")
        a("s_add_u32 s81, s81, s80")
        a("s_add_u32 s86, s86, s36")
    a(f"v_cmp_lt_u32 s[4:5], s{sWAVE}, v129")
    a("v_cmp_lt_u32 vcc, 8, v129")
    a("s_mov_b32 s36, 0")
    a("s_cbranch_vccnz K3_TAIL")
    a.label("K3_TAILDONE")
    a(f"s_cmp_gt_u32 s81, {MAXG}")
    a("s_cbranch_scc1 K3_SPLIT")
    a("s_cmp_lg_u32 s87, 0")
    a("s_cbranch_scc1 K3_MARKERS")
    a.label("K3_MARKDONE")
    a("v_mbcnt_lo_u32_b32 v131, s4, 0")
    a("v_mbcnt_hi_u32_b32 v131, s5, v131")
    a(f"s_lshl_b32 s80, s{sWAVE}, 4")
    a("v_subrev_u32 v132, s80, v128")
    a("v_add_u32 v131, s86, v131")
    a("v_min_u32 v132, 16, v132")
    a("v_lshlrev_b32 v133, 2, v131")
    a("v_lshl_add_u32 v132, v132, 22, v130")
    a(f"v_subrev_u32 v131, s{sWAVE}, v131")
    a("v_lshlrev_b32 v131, 6, v131")
    a(f"s_lshl_b32 s80, s{sWAVE}, 2")
    a("v_add_u32 v9, s80, v9")
    a("ds_write_b32 v9, v131")
    a("s_mov_b64 exec, s[4:5]")
    a(f"ds_write_b32 v133, v132 offset:{DESC}")
    a("s_mov_b64 exec, -1")
    a("s_cmp_lg_u32 s36, 0")
    a("s_cbranch_scc1 K3_TAILDESC")
    a.label("K3_TAILDESCDONE")
    a("s_add_u32 s81, s81, 1")
    a(f"s_lshr_b32 s{sNT}, s81, 1")
    a.c("scatter part 1 (independent of the table)")
    for r in range(16):
        a(f"v_lshrrev_b32 v9, 4, v{48+r}")
        a("v_min_u32 v9, 8, v9")
        a(f"v_lshl_add_u32 v{32+r}, v9, 2, v{32+r}")
        a(f"v_lshrrev_b32 v{16+r}, 18, v{16+r}")
    a("s_waitcnt vmcnt(0) lgkmcnt(0)")
    a("s_barrier")
    stamp("scan")
    a.c("==== scatter")
    for r in range(16):
        a(f"ds_read_b32 v{32+r}, v{32+r}")
    a.c("list lane parts")
    a("v_lshrrev_b32 v8, 3, v13")
    a(f"v_lshlrev_b32 v{LS}, 3, v8")
    a("""
    v_and_b32 v8, 7, v13
    v_bfe_u32 v9, v13, 3, 2
    v_lshl_add_u32 v8, v8, 2, v9
    """)
    a(f"v_lshlrev_b32 v{LE}, 2, v8")
    a("v_lshrrev_b32 v8, 5, v13")
    a(f"v_lshlrev_b32 v{LD}, 2, v8")
    for r in range(16):
        if r==0: a("s_waitcnt lgkmcnt(8)")
        if r==8: a("s_waitcnt lgkmcnt(8)") if False else a("s_waitcnt lgkmcnt(0)")
        a(f"v_lshl_add_u32 v{32+r}, v{48+r}, 2, v{32+r}")
        a(f"v_lshrrev_b32 v{48+r}, 1, v{32+r}")
    for r in range(16):
        a(f"s_mov_b64 exec, s[{sM+2*r}:{sM+2*r+1}]")
        a(f"ds_write_b32 v{32+r}, v{64+r} offset:{LIST_E}")
        a(f"ds_write_b16 v{48+r}, v{16+r} offset:{LIST_S}")
    a("s_mov_b64 exec, -1")
    a(f"s_cmp_lg_u32 s{sMODE}, 0")
    a("s_cbranch_scc1 K3_NOOPR")
    a.c("node GEMM operands: A -> X regs (x_dst rows), B -> MK regs")
    a(f"s_bfe_u32 s38, s{sWAVE}, 0x10001")
    a("s_lshl_b32 s80, s38, 12")
    a(f"s_add_u32 s80, s80, {XD}")
    a(f"s_sub_u32 s80, s80, s{sST0}")
    for j in range(4):
        a(f"v_add_u32 v12, s80, v{XRD+j}")
        a(f"ds_read_b128 {vr(X+4*j,4)}, v12")
    a(f"s_and_b32 s37, s{sWAVE}, 1")
    a(f"s_lshr_b32 s39, s{sWAVE}, 2")
    a("s_lshl_b32 s80, s37, 14")
    a("s_lshl_b32 s81, s39, 10")
    a("s_add_u32 s80, s80, s81")
    a(f"s_add_u32 s80, s80, {STAGE+4*8192}")
    a("v_lshlrev_b32 v12, 4, v13")
    a("v_add_u32 v12, s80, v12")
    for j in range(4):
        a(f"ds_read_b128 {vr(MK+4*j,4)}, v12 offset:{(j>>1)*8192+(j&1)*2048}")
    a.label("K3_NOOPR")
    a(f"v_mov_b32 v{VONE}, 1")
    a(f"s_mov_b32 s{sT1}, s{sWAVE}")
    a(f"s_add_u32 s{sT2}, s{sWAVE}, 8")
    for s in list_addr(sT1): a(s)
    a("s_waitcnt lgkmcnt(0)")
    a("s_barrier")
    stamp("main")
    a.c("==== pipeline prologue: tile T0 = wave, T1 = wave+8, then dynamic")
    for s in read_list(): a(s)
    for s in desc_addr(sT1): a(s)
    a(f"ds_read_b32 v{VD}, v{AD} offset:{DESC}")
    for s in fetch_tile(): a(s)
    a("s_waitcnt lgkmcnt(2)")
    for s in issue_loads(0): a(s)
    a(f"s_cmp_lg_u32 s{sMODE}, 0")
    a("s_cbranch_scc1 K3_NOW")
    a.c("node GEMM -> a[72:87]; main weights -> a[0:71]")
    for j in range(4):
        c = "0" if j==0 else ar(AU,16)
        a(f"v_mfma_f32_32x32x16_bf16 {ar(AU,16)}, {vr(X+4*j,4)}, {vr(MK+4*j,4)}, {c}")
    a("v_and_b32 v9, 63, v0")
    a("v_lshlrev_b32 v9, 4, v9")
    a(f"v_add_u32 v9, {STAGE+4096+3*8192}, v9")
    for p in range(18):
        a(f"ds_read_b128 {ar(4*p,4)}, v9 offset:{(p>>2)*8192+(p&3)*1024}")
    a(f"s_and_b32 s37, s{sWAVE}, 1")
    a("s_cmp_eq_u32 s37, 1")
    a("s_cbranch_scc1 K3_NOW")
    a.c("A waves: Aneg = -log2e * D -> node records")
    a(f"s_bfe_u32 s38, s{sWAVE}, 0x10001")
    a(f"s_lshr_b32 s39, s{sWAVE}, 2")
    a(f"s_mul_i32 s80, s38, {32*NREC}")
    a("s_lshl_b32 s81, s39, 7")
    a("s_add_u32 s80, s80, s81")
    a(f"s_add_u32 s80, s80, {NREC}")
    a("v_bfe_u32 v9, v0, 5, 1")
    a(f"v_mul_u32_u24 v9, {4*NREC}, v9")
    a(f"v_add_u32 v10, v9, v{LOFF}")
    a("v_add_u32 v10, s80, v10")
    pack_a(a)
    lab=a.newlabel("K3_NW"); end=a.newlabel("K3_NWE")
    for r in range(8):
        a(f"ds_write_b32 v10, v{64+r} offset:{((r&3)+8*(r>>2))*NREC}")
    a("s_cmp_eq_u32 s38, 1")
    a(f"s_cbranch_scc1 {lab}")
    for r in range(8,16):
        a(f"ds_write_b32 v10, v{64+r} offset:{((r&3)+8*(r>>2))*NREC}")
    a(f"s_branch {end}")
    a.label(lab)
    a("s_mov_b32 exec_hi, 0")
    a(f"ds_write_b32 v10, v72 offset:{16*NREC}")
    a("s_mov_b32 exec_hi, -1")
    a.label(end)
    a.label("K3_NOW")
    a("s_waitcnt lgkmcnt(0)")
    a("s_barrier")
    stamp("wread")
    a(f"v_readfirstlane_b32 s{sT3}, v{VCT}")
    for s in list_addr(sT2): a(s)
    for s in read_list(): a(s)
    a("s_waitcnt lgkmcnt(0)")
    for s in issue_loads(1): a(s)
    for s in list_addr(sT3): a(s)
    for s in read_list(): a(s)
    a(f"s_cmp_ge_u32 s{sT1}, s{sNT}")
    a("s_cbranch_scc1 K3_BATCHEND")
    a.c("ring: current = T1(old) ; next = T2 ; next2 = T3")
    a(f"s_mov_b32 s{sT1}, s{sT2}")
    a(f"s_mov_b32 s{sT2}, s{sT3}")
    a("s_waitcnt vmcnt(5)")
    for s in node_addr(0): a(s)
    for s in read_x(0): a(s)
    a(read_a(0)); a(read_a(1))
    a("s_waitcnt lgkmcnt(0)")
    for s in chain(0,0): a(s)
    a("s_nop 7"); a("s_nop 7")
    if 'prio47' in X_ or 'prio03' in X_:
        a(f"s_cmp_ge_u32 s{sWAVE}, 4")
        a("s_cbranch_scc0 K3_NOPRIO" if 'prio47' in X_ else "s_cbranch_scc1 K3_NOPRIO")
        a("s_setprio 1")
        a.label("K3_NOPRIO")
    stamp("pipe")
    al=os.environ.get('ALIGN')
    if al:
        p,off=al.split(':')
        a(f".p2align {p}")
        for _ in range(int(off)//4): a("s_nop 0")
    else: a(".p2align 3")
    a.label("K3_LOOP")
    tile_body(a,0)
    a("s_cbranch_scc0 K3_BATCHEND")
    tile_body(a,1)
    a("s_cbranch_scc1 K3_LOOP")
    a.label("K3_BATCHEND")
    a("s_waitcnt vmcnt(0) lgkmcnt(0)")
    stamp("loopend")
    a.c("U waves park their U tile in their own stage area")
    a(f"s_and_b32 s37, s{sWAVE}, 1")
    a("s_cmp_eq_u32 s37, 0")
    a("s_cbranch_scc1 K3_NOU")
    a("v_bfe_u32 v9, v0, 5, 1")
    a("v_lshlrev_b32 v9, 9, v9")
    a(f"v_add_u32 v9, v9, v{LOF4}")
    a(f"v_add_u32 v9, s{sST0}, v9")
    for r in range(16):
        a(f"ds_write_b32 v9, a{AU+r} offset:{((r&3)+8*(r>>2))*128}")
    a.label("K3_NOU")
    a(f"v_mov_b32 v8, {OVF}")
    a("s_waitcnt lgkmcnt(0)")
    a("s_barrier")
    a.c("==== next batch?  mode 0: done with slots ; 1: second half next ; 2/3: overflow segments")
    a("ds_read_b32 v9, v8")
    a("v_cmp_gt_u32 vcc, 0x188, v0")
    a("v_lshrrev_b32 v16, 3, v0")
    a("v_and_b32 v17, 7, v0")
    a(f"v_mul_u32_u24 v10, {NREC}, v16")
    a("v_lshl_add_u32 v10, v17, 6, v10")
    a(f"v_add_u32 v10, {NODE+NREC}, v10")
    a("v_lshrrev_b32 v11, 5, v16")
    a("v_lshrrev_b32 v12, 2, v17")
    a("v_lshlrev_b32 v11, 14, v11")
    a("v_lshl_add_u32 v11, v12, 15, v11")
    a("v_and_b32 v12, 31, v16")
    a("v_lshl_add_u32 v11, v12, 7, v11")
    a("v_and_b32 v12, 3, v17")
    a("v_lshl_add_u32 v11, v12, 5, v11")
    a(f"v_add_u32 v11, {STAGE+8192}, v11")
    a(f"s_cmp_eq_u32 s{sMODE}, 1")
    a("s_cbranch_scc1 K3_HALF2")
    a("s_waitcnt lgkmcnt(0)")
    a("v_readfirstlane_b32 s80, v9")
    a("s_nop 3")
    a("s_cmp_eq_u32 s80, 0")
    a("s_cbranch_scc1 K3_EPI")
    a("s_lshl_b32 s81, s80, 2")
    a(f"s_add_u32 s81, s81, {OVF+12}")
    a("v_mov_b32 v8, s81")
    a("ds_read_b32 v9, v8")
    a("s_waitcnt lgkmcnt(0)")
    a("v_readfirstlane_b32 s82, v9")
    a("s_barrier")
    a("s_sub_u32 s80, s80, 1")
    a(f"v_mov_b32 v8, {OVF}")
    a("v_mov_b32 v9, s80")
    a("ds_write_b32 v8, v9")
    a("s_lshr_b32 s83, s82, 24")
    a("s_bfe_u32 s84, s82, 0xc000c")
    a("s_and_b32 s85, s82, 0xfff")
    a("s_mul_i32 s86, s83, 12500")
    a(f"s_add_u32 s86, s86, {WS_COMPACT}")
    a("s_lshl_b32 s84, s84, 2")
    a("s_add_u32 s86, s86, s84")
    a("s_lshl_b32 s85, s85, 2")
    a(f"s_add_u32 s{sREC+2}, s86, s85")
    a("s_mul_i32 s83, s83, 3125")
    a("v_mov_b32 v3, s83")
    a(f"s_mov_b32 s{sSTEP}, 0")
    a(f"s_mov_b32 s{sMODE}, 3")
    a("v_lshlrev_b32 v8, 4, v0")
    a("v_add_u32 v8, s86, v8")
    for i in range(4):
        a(f"buffer_load_dwordx4 {vr(16+4*i,4)}, v8, {sr(sREC,4)}, 0 offen")
        if i<3: a("v_add_u32 v8, 8192, v8")
    a("v_and_b32 v13, 63, v0")
    a("s_waitcnt vmcnt(0)")
    a("s_branch K3_BATCH")
    a.label("K3_BATCH")
    prefill(True)
    a("s_branch K3_HIST")
    a.label("K3_SPLIT")
    a("s_waitcnt vmcnt(0) lgkmcnt(0)")
    a("s_barrier")
    a.c("node GEMM operands: A -> X regs (x_dst rows), B -> MK regs")
    a(f"s_bfe_u32 s38, s{sWAVE}, 0x10001")
    a("s_lshl_b32 s80, s38, 12")
    a(f"s_add_u32 s80, s80, {XD}")
    a(f"s_sub_u32 s80, s80, s{sST0}")
    for j in range(4):
        a(f"v_add_u32 v12, s80, v{XRD+j}")
        a(f"ds_read_b128 {vr(X+4*j,4)}, v12")
    a(f"s_and_b32 s37, s{sWAVE}, 1")
    a(f"s_lshr_b32 s39, s{sWAVE}, 2")
    a("s_lshl_b32 s80, s37, 14")
    a("s_lshl_b32 s81, s39, 10")
    a("s_add_u32 s80, s80, s81")
    a(f"s_add_u32 s80, s80, {STAGE+4*8192}")
    a("v_lshlrev_b32 v12, 4, v13")
    a("v_add_u32 v12, s80, v12")
    for j in range(4):
        a(f"ds_read_b128 {vr(MK+4*j,4)}, v12 offset:{(j>>1)*8192+(j&1)*2048}")
    a("s_waitcnt lgkmcnt(0)")
    a.c("first pass also has to finish the one-time work (node GEMM, weights) that the restart skips")
    for j in range(4):
        c = "0" if j==0 else ar(AU,16)
        a(f"v_mfma_f32_32x32x16_bf16 {ar(AU,16)}, {vr(X+4*j,4)}, {vr(MK+4*j,4)}, {c}")
    a("v_and_b32 v9, 63, v0")
    a("v_lshlrev_b32 v9, 4, v9")
    a(f"v_add_u32 v9, {STAGE+4096+3*8192}, v9")
    for p in range(18):
        a(f"ds_read_b128 {ar(4*p,4)}, v9 offset:{(p>>2)*8192+(p&3)*1024}")
    a(f"s_and_b32 s37, s{sWAVE}, 1")
    a("s_cmp_eq_u32 s37, 1")
    a("s_cbranch_scc1 K3_SPLIT2")
    a(f"s_bfe_u32 s38, s{sWAVE}, 0x10001")
    a(f"s_lshr_b32 s39, s{sWAVE}, 2")
    a(f"s_mul_i32 s80, s38, {32*NREC}")
    a("s_lshl_b32 s81, s39, 7")
    a("s_add_u32 s80, s80, s81")
    a(f"s_add_u32 s80, s80, {NREC}")
    a("v_bfe_u32 v9, v0, 5, 1")
    a(f"v_mul_u32_u24 v9, {4*NREC}, v9")
    a(f"v_add_u32 v10, v9, v{LOFF}")
    a("v_add_u32 v10, s80, v10")
    a("s_nop 7")
    pack_a(a)
    lab=a.newlabel("K3_NW"); end=a.newlabel("K3_NWE")
    for r in range(8):
        a(f"ds_write_b32 v10, v{64+r} offset:{((r&3)+8*(r>>2))*NREC}")
    a("s_cmp_eq_u32 s38, 1")
    a(f"s_cbranch_scc1 {lab}")
    for r in range(8,16):
        a(f"ds_write_b32 v10, v{64+r} offset:{((r&3)+8*(r>>2))*NREC}")
    a(f"s_branch {end}")
    a.label(lab)
    a("s_mov_b32 exec_hi, 0")
    a(f"ds_write_b32 v10, v72 offset:{16*NREC}")
    a("s_mov_b32 exec_hi, -1")
    a.label(end)
    a.label("K3_SPLIT2")
    a("s_waitcnt lgkmcnt(0)")
    a("s_barrier")
    a(f"s_mov_b32 s{sMODE}, 1")
    for i in range(2):
        a(f"buffer_load_dwordx4 {vr(16+4*i,4)}, v{RECO+i}, {sr(sREC,4)}, 0 offen")
    for r in range(8,16): a(f"v_mov_b32 v{16+r}, 0")
    a("s_waitcnt vmcnt(0)")
    a("s_branch K3_BATCH")
    a.label("K3_HALF2")
    a(f"s_mov_b32 s{sMODE}, 2")
    rec_offsets()
    for i in range(2,4):
        a(f"buffer_load_dwordx4 {vr(16+4*i,4)}, v{RECO+i}, {sr(sREC,4)}, 0 offen")
    for r in range(8): a(f"v_mov_b32 v{16+r}, 0")
    a("v_and_b32 v13, 63, v0")
    a("s_waitcnt vmcnt(0) lgkmcnt(0)")
    a("s_branch K3_BATCH")
    a.label("K3_MARKERS")
    a("v_lshrrev_b32 v8, 3, v0")
    a("v_mov_b32 v10, 1")
    a(f"v_mov_b32 v11, {OVF}")
    a(f"s_mov_b32 s80, {TAB+63*TROW}")
    for r in range(16):
        lab=a.newlabel("K3_MK")
        a(f"v_cmp_eq_u32 vcc, s80, v{32+r}")
        a(f"s_and_b64 vcc, vcc, s[{sM+2*r}:{sM+2*r+1}]")
        a(f"s_cbranch_vccz {lab}")
        a(f"s_andn2_b64 s[{sM+2*r}:{sM+2*r+1}], s[{sM+2*r}:{sM+2*r+1}], vcc")
        a("s_mov_b64 exec, vcc")
        a("ds_add_rtn_u32 v134, v11, v10")
        a(f"v_add_u32 v12, {64*(r//4)}, v8")
        a("v_lshlrev_b32 v12, 24, v12")
        a(f"v_bfe_u32 v135, v{16+r}, 6, 12")
        a("v_lshl_add_u32 v12, v135, 12, v12")
        a(f"v_lshrrev_b32 v135, 18, v{16+r}")
        a("v_add_u32 v12, v135, v12")
        a("s_waitcnt lgkmcnt(0)")
        a("v_lshlrev_b32 v134, 2, v134")
        a(f"ds_write_b32 v134, v12 offset:{OVF+16}")
        a("s_mov_b64 exec, -1")
        a.label(lab)
    a("s_branch K3_MARKDONE")
    a.label("K3_TAIL")
    a("v_subrev_u32 v134, 8, v129")
    a("v_max_i32 v134, 0, v134")
    a("v_mov_b32 v135, v134")
    for sh in (1,2,4,8):
        a("s_nop 1")
        a(f"v_add_u32_dpp v135, v135, v135 row_shr:{sh} row_mask:0xf bank_mask:0xf bound_ctrl:0")
    a("s_nop 1")
    a("v_add_u32_dpp v135, v135, v135 row_bcast:15 row_mask:0xa bank_mask:0xf")
    a("s_nop 1")
    a("v_add_u32_dpp v135, v135, v135 row_bcast:31 row_mask:0xc bank_mask:0xf")
    a("s_nop 1")
    a("v_readlane_b32 s80, v135, 63")
    a("v_sub_u32 v135, v135, v134")
    a("v_add_u32 v135, s81, v135")
    a("v_subrev_u32 v149, 8, v135")
    a("v_lshlrev_b32 v149, 6, v149")
    a("ds_write_b32 v9, v149 offset:32")
    a("s_add_u32 s81, s81, s80")
    a("s_mov_b32 s36, 1")
    a("s_branch K3_TAILDONE")
    a.label("K3_TAILDESC")
    a("s_mov_b32 s36, 8")
    a.label("K3_TLOOP")
    a("v_cmp_lt_u32 vcc, s36, v129")
    a("s_cbranch_vccz K3_TAILDESCDONE")
    a("s_lshl_b32 s80, s36, 4")
    a("v_subrev_u32 v132, s80, v128")
    a("v_min_u32 v132, 16, v132")
    a("v_lshl_add_u32 v132, v132, 22, v130")
    a("s_sub_u32 s80, s36, 8")
    a("v_add_u32 v133, s80, v135")
    a("v_lshlrev_b32 v133, 2, v133")
    a("s_mov_b64 exec, vcc")
    a(f"ds_write_b32 v133, v132 offset:{DESC}")
    a("s_mov_b64 exec, -1")
    a("s_add_u32 s36, s36, 1")
    a("s_branch K3_TLOOP")
    a.label("K3_EPI")
    a("s_and_saveexec_b64 s[38:39], vcc")
    a("s_cbranch_execz K3_END")
    a("ds_read_b128 v[24:27], v11")
    a("ds_read_b128 v[28:31], v11 offset:16")
    for q in range(4):
        a(f"ds_read_b128 {vr(48+4*q,4)}, v10 offset:{256+16*q}")
        a(f"ds_read_b128 {vr(64+4*q,4)}, v10 offset:{768+16*q}")
    a(f"v_add_u32 v8, s{sNODE0}, v16")
    a("v_lshlrev_b32 v8, 7, v8")
    a("v_lshl_add_u32 v8, v17, 4, v8")
    a("s_mov_b32 s80, 0x358637bd")
    a("s_waitcnt lgkmcnt(0)")
    for i in range(8): a(f"v_cvt_f32_f64 v{32+i}, {vr(48+2*i,2)}")
    for i in range(8): a(f"v_cvt_f32_f64 v{40+i}, {vr(64+2*i,2)}")
    for i in range(8): a(f"v_add_f32 v{32+i}, s80, v{32+i}")
    for i in range(8): a(f"v_rcp_f32 v{32+i}, v{32+i}")
    a("s_nop 0")
    for i in range(8): a(f"v_fma_f32 v{24+i}, v{40+i}, v{32+i}, v{24+i}")
    for i in range(8): a(f"v_max_f32 v{24+i}, 0, v{24+i}")
    for i in range(4):
        a(f"v_lshlrev_b32 v40, 16, v{XEPI+i}")
        a(f"v_and_b32 v41, 0xffff0000, v{XEPI+i}")
        a(f"v_add_f32 v{24+2*i}, v40, v{24+2*i}")
        a(f"v_add_f32 v{25+2*i}, v41, v{25+2*i}")
    for i in range(4):
        a(f"v_cvt_pk_bf16_f32 v{44+i}, v{24+2*i}, v{25+2*i}")
    a(f"buffer_store_dwordx4 v[44:47], v8, {sr(sOUT,4)}, 0 offen")
    if STAMP:
        a("s_waitcnt vmcnt(0)")
        stamp("end"); stamp("rt1")
        a("v_and_b32 v9, 63, v0")
        a("v_cmp_eq_u32 vcc, 0, v9")
        a("s_and_b64 exec, exec, vcc")
        a("s_cbranch_execz K3_END")
        a(f"s_mov_b32 s{sREC+2}, {WS_STAMP+256*8*64}")
        a(f"s_lshl_b32 s80, s2, 3")
        a(f"s_add_u32 s80, s80, s{sWAVE}")
        a(f"s_lshl_b32 s80, s80, 6")
        a(f"s_add_u32 s80, s80, {WS_STAMP}")
        a("v_mov_b32 v8, s80")
        for i in range(len(STAMP)):
            a(f"v_mov_b32 v16, s{88+2*i}")
            a(f"v_mov_b32 v17, s{89+2*i}")
            a(f"buffer_store_dwordx2 v[16:17], v8, {sr(sREC,4)}, 0 offen offset:{8*i}")
            a("s_nop 1")
    a.label("K3_END")
    a("s_endpgm")
    return a.text(), kdesc(name, 256, 102, 168)
```

```python
from asmlib import *
N=12500; E=800000; CH=3125; BN=49
WS_SLOTS=0; WS_COMPACT=0x800000; WS_W=0xC00000
K1_LINES=0; K1_CNT=32768; K1_FLAG=32768+1024; K1_START=32768+2048; K1_LDS=32768+4096

import os
STAMP1=os.environ['STAMP1'].split(',') if os.environ.get('STAMP1') else False
WS_STAMP1=0xE00000
def gen_k1(name="bucket_kernel"):
    a=Asm()
    def stamp(nm):
        if STAMP1 and nm in STAMP1:
            i=STAMP1.index(nm)
            a(f"s_mem{'real' if nm.startswith('rt') else ''}time s[{48+2*i}:{49+2*i}]")
            a("s_waitcnt lgkmcnt(0)")
    a.raw(f".globl {name}\n.p2align 8\n.type {name},@function\n{name}:")
    a("s_cmp_gt_u32 s2, 256")
    a("s_cbranch_scc1 K1_END")
    stamp("start"); stamp("rt0")
    a("s_load_dwordx4 s[4:7], s[0:1], 16")
    a("s_load_dwordx2 s[8:9], s[0:1], 88")
    a("s_cmp_eq_u32 s2, 256")
    a("s_cbranch_scc1 K1_WEIGHTS")
    a.c("zero LDS lines + counters")
    a("""
    v_lshlrev_b32 v1, 4, v0
    v_mov_b32 v4, 0
    v_mov_b32 v5, 0
    v_mov_b32 v6, 0
    v_mov_b32 v7, 0
    v_lshlrev_b32 v2, 2, v0
    ds_write_b128 v1, v[4:7]
    ds_write_b128 v1, v[4:7] offset:16384
    """)
    a(f"ds_write_b32 v2, v4 offset:{K1_CNT}")
    a(f"s_mul_i32 s10, s2, {CH*4}")
    a(f"s_sub_u32 s11, {E*4}, s10")
    a(f"s_min_u32 s11, s11, {CH*4}")
    a("s_waitcnt lgkmcnt(0)")
    stamp("karg")
    a.c("SRDs: dst s[12:15], src s[16:19], ws s[20:23]")
    a("""
    s_add_u32 s12, s6, s10
    s_addc_u32 s13, s7, 0
    s_and_b32 s13, s13, 0xffff
    s_mov_b32 s14, s11
    s_mov_b32 s15, 0x20000
    s_add_u32 s16, s4, s10
    s_addc_u32 s17, s5, 0
    s_and_b32 s17, s17, 0xffff
    s_mov_b32 s18, s11
    s_mov_b32 s19, 0x20000
    buffer_load_dwordx4 v[8:11], v1, s[12:15], 0 offen
    """)
    a.srd(20, 8, 9, WS_COMPACT + 256*CH*4)
    PF=int(os.environ.get('PF','0'))
    a("s_barrier")
    a("buffer_load_dwordx4 v[12:15], v1, s[16:19], 0 offen")
    if PF:
        a.c("waves 13..15 hold no edges: they touch the first PF*256 lines of e_attr (streaming, results unused)")
        a("v_lshrrev_b32 v60, 6, v0")
        a("s_nop 0")
        a("v_readfirstlane_b32 s43, v60")
        a("s_nop 3")
        a("s_cmp_lt_u32 s43, 13")
        a("s_cbranch_scc1 K1_NOPF")
        a("s_load_dwordx2 s[40:41], s[0:1], 8")
        a(f"s_mul_i32 s42, s2, {PF*128}")
        a("v_subrev_u32 v60, 832, v0")
        a("v_lshlrev_b32 v61, 7, v60")
        a("s_waitcnt lgkmcnt(0)")
        a("s_mov_b32 s44, s40")
        a("s_and_b32 s45, s41, 0xffff")
        a(f"s_mov_b32 s46, {E*32}")
        a("s_mov_b32 s47, 0x20000")
        for r in range((PF+191)//192):
            n=min(PF-192*r,192)
            if n<192:
                a(f"v_cmp_gt_u32 vcc, {n}, v60")
                a("s_and_b64 exec, exec, vcc")
            a(f"buffer_load_dword v{32+r}, v61, s[44:47], s42 offen")
            a("s_add_u32 s42, s42, 24576")
        a("s_mov_b64 exec, -1")
        for k in range(4): a(f"s_mov_b64 s[{24+2*k}:{25+2*k}], 0")
        a("s_branch K1_NOFLAG")
        a.label("K1_NOPF")
    a.c("eloc_k = 4*tid+k ; valid masks s[24+2k:25+2k]")
    a("v_lshlrev_b32 v3, 2, v0")
    for k in range(4):
        a(f"v_add_u32 v{16+k}, {k}, v3")
    for k in range(4):
        a(f"v_cmp_gt_u32 s[{24+2*k}:{25+2*k}], s14, v{16+k}") if False else None
    a("s_lshr_b32 s11, s11, 2")
    for k in range(4):
        a(f"v_cmp_gt_u32 s[{24+2*k}:{25+2*k}], s11, v{16+k}")
    a("v_mov_b32 v40, 1")
    a("s_movk_i32 s10, 21400")
    stamp("bar1")
    a(f"s_waitcnt vmcnt({1 if not PF else 1})")
    stamp("dst")
    for k in range(4):
        a(f"v_mul_u32_u24 v{20+k}, s10, v{8+k}")
    for k in range(4):
        a(f"v_lshrrev_b32 v{20+k}, 20, v{20+k}")
    for k in range(4):
        a(f"v_mul_u32_u24 v{24+k}, 49, v{20+k}")
        a(f"v_lshlrev_b32 v{28+k}, 2, v{20+k}")
    for k in range(4):
        a(f"s_mov_b64 exec, s[{24+2*k}:{25+2*k}]")
        a(f"ds_add_rtn_u32 v{32+k}, v{28+k}, v40 offset:{K1_CNT}")
    a("s_mov_b64 exec, -1")
    for k in range(4):
        a(f"v_sub_u32 v{24+k}, v{8+k}, v{24+k}")
        a(f"v_lshl_add_u32 v{16+k}, v{16+k}, 6, v{24+k}")
    a("s_waitcnt vmcnt(0)")
    for k in range(4):
        a(f"v_lshl_add_u32 v{16+k}, v{12+k}, 18, v{16+k}")
        a(f"v_add_u32 v{16+k}, 1, v{16+k}")
        a(f"v_lshlrev_b32 v{24+k}, 7, v{20+k}")
    a("s_waitcnt lgkmcnt(0)")
    for k in range(4):
        a(f"v_lshl_add_u32 v{24+k}, v{32+k}, 2, v{24+k}")
    a("s_mov_b64 s[34:35], 0")
    for k in range(4):
        a(f"v_cmp_gt_u32 vcc, 32, v{32+k}")
        a(f"s_and_b64 exec, vcc, s[{24+2*k}:{25+2*k}]")
        a(f"ds_write_b32 v{24+k}, v{16+k}")
        a(f"s_andn2_b64 s[36:37], s[{24+2*k}:{25+2*k}], vcc")
        a("s_or_b64 s[34:35], s[34:35], s[36:37]")
        a("s_mov_b64 exec, -1")
    a.c("any overflow in this wave -> set flag")
    a("s_cmp_eq_u64 s[34:35], 0")
    a("s_cbranch_scc1 K1_NOFLAG")
    a(f"v_mov_b32 v41, {K1_FLAG}")
    a("ds_write_b32 v41, v40")
    a.label("K1_NOFLAG")
    a("s_waitcnt lgkmcnt(0)")
    stamp("scat")
    a("s_barrier")
    stamp("bar2")
    a(f"v_mov_b32 v41, {K1_FLAG}")
    a("ds_read_b32 v42, v41")
    a("ds_read_b128 v[44:47], v1")
    a("ds_read_b128 v[48:51], v1 offset:16384")
    a.c("global offsets for copy-out: line b = (i*1024+tid)>>3")
    a("""
    v_lshrrev_b32 v52, 3, v0
    v_and_b32 v53, 7, v0
    v_lshlrev_b32 v53, 4, v53
    v_add_u32 v54, s2, v52
    v_and_b32 v55, 255, v54
    v_lshl_add_u32 v55, v55, 7, v53
    v_lshl_add_u32 v55, v52, 15, v55
    v_add_u32 v54, 128, v54
    v_and_b32 v54, 255, v54
    v_lshl_add_u32 v54, v54, 7, v53
    v_add_u32 v52, 128, v52
    v_lshl_add_u32 v54, v52, 15, v54
    """)
    a("s_waitcnt lgkmcnt(2)")
    a("v_readfirstlane_b32 s10, v42")
    a("s_nop 3")
    a("s_cmp_lg_u32 s10, 0")
    a("s_cbranch_scc1 K1_SLOW")
    a.label("K1_COPY")
    a("s_waitcnt lgkmcnt(0)")
    fl=os.environ.get('K1ST','')
    a(f"buffer_store_dwordx4 v[44:47], v55, s[20:23], 0 offen {fl}")
    a(f"buffer_store_dwordx4 v[48:51], v54, s[20:23], 0 offen {fl}")
    if STAMP1:
        a("s_waitcnt vmcnt(0)")
        stamp("end"); stamp("rt1")
        a("v_and_b32 v9, 63, v0")
        a("v_cmp_eq_u32 vcc, 0, v9")
        a("s_and_b64 exec, exec, vcc")
        a(f"s_mov_b32 s22, {WS_STAMP1+256*16*64}")
        a("v_lshrrev_b32 v8, 6, v0")
        a("v_lshlrev_b32 v8, 6, v8")
        a("s_lshl_b32 s10, s2, 10")
        a(f"s_add_u32 s10, s10, {WS_STAMP1}")
        a("v_add_u32 v8, s10, v8")
        for i in range(len(STAMP1)):
            a(f"v_mov_b32 v16, s{48+2*i}")
            a(f"v_mov_b32 v17, s{49+2*i}")
            a(f"buffer_store_dwordx2 v[16:17], v8, s[20:23], 0 offen offset:{8*i}")
            a("s_nop 1")
        if os.environ.get('DBGOUT'):
            a("s_mov_b64 exec, 1")
            a("s_cmp_eq_u32 s2, 100")
            a("s_cbranch_scc0 K1_END")
            a("v_lshrrev_b32 v8, 6, v0")
            a("s_nop 0")
            a("v_readfirstlane_b32 s10, v8")
            a("s_nop 3")
            a("s_cmp_eq_u32 s10, 0")
            a("s_cbranch_scc0 K1_END")
            a("s_load_dwordx2 s[4:5], s[0:1], 80")
            a("s_waitcnt lgkmcnt(0)")
            a("s_mov_b32 s8, s4\ns_and_b32 s9, s5, 0xffff\ns_mov_b32 s10, 256\ns_mov_b32 s11, 0x20000")
            a("v_mov_b32 v8, 0")
            for i in range(len(STAMP1)):
                if STAMP1[i].startswith('rt'): a(f"v_mov_b32 v16, s{48+2*i}")
                else:
                    a(f"s_sub_u32 s12, s{48+2*i}, s48"); a("v_mov_b32 v16, s12")
                a(f"buffer_store_dword v16, v8, s[8:11], 0 offen offset:{32+4*i}")
                a("s_nop 1")
    a("s_endpgm")
    a.label("K1_SLOW")
    a.c("lines with more than 32 records keep 31 of them; slot 31 becomes a marker pointing at the rest in the compact list")
    a("s_waitcnt lgkmcnt(0)")
    a("v_cmp_gt_u32 vcc, 0x100, v0")
    a("s_and_saveexec_b64 s[38:39], vcc")
    a("s_cbranch_execz K1_S1")
    a(f"ds_read_b32 v57, v2 offset:{K1_CNT}")
    a("s_waitcnt lgkmcnt(0)")
    a("v_cmp_lt_u32 vcc, 32, v57")
    a("s_and_b64 exec, exec, vcc")
    a("s_cbranch_execz K1_S1")
    a("v_subrev_u32 v57, 31, v57")
    a(f"v_mov_b32 v58, {K1_FLAG+4}")
    a("ds_add_rtn_u32 v56, v58, v57")
    a("v_lshlrev_b32 v58, 7, v0")
    a("s_waitcnt lgkmcnt(0)")
    a(f"ds_write_b32 v2, v56 offset:{K1_START}")
    a("v_lshlrev_b32 v59, 6, v56")
    a("v_lshl_add_u32 v59, v57, 18, v59")
    a("v_or_b32 v59, 63, v59")
    a("ds_write_b32 v58, v59 offset:124")
    a.label("K1_S1")
    a("s_mov_b64 exec, -1")
    a("s_waitcnt lgkmcnt(0)")
    a("s_barrier")
    a(f"s_mul_i32 s10, s2, {CH*4}")
    a(f"s_add_u32 s10, s10, {WS_COMPACT}")
    for k in range(4):
        lab=a.newlabel("K1_SK")
        a(f"v_cmp_lt_u32 vcc, 30, v{32+k}")
        a(f"s_and_b64 exec, vcc, s[{24+2*k}:{25+2*k}]")
        a(f"s_cbranch_execz {lab}")
        a(f"ds_read_b32 v57, v{28+k} offset:{K1_CNT}")
        a(f"ds_read_b32 v58, v{28+k} offset:{K1_START}")
        a("s_waitcnt lgkmcnt(0)")
        a("v_cmp_lt_u32 vcc, 32, v57")
        a("s_and_b64 exec, exec, vcc")
        a(f"s_cbranch_execz {lab}")
        a(f"v_add_u32 v58, v58, v{32+k}")
        a("v_subrev_u32 v58, 31, v58")
        a("v_lshlrev_b32 v58, 2, v58")
        a(f"buffer_store_dword v{16+k}, v58, s[20:23], s10 offen")
        a.label(lab)
        a("s_mov_b64 exec, -1")
    a("ds_read_b128 v[44:47], v1")
    a("ds_read_b128 v[48:51], v1 offset:16384")
    a("s_branch K1_COPY")
    a.label("K1_WEIGHTS")
    a("s_load_dwordx8 s[12:19], s[0:1], 32")
    a("s_load_dwordx2 s[20:21], s[0:1], 64")
    a("""
    v_lshrrev_b32 v1, 6, v0
    v_and_b32 v2, 63, v0
    v_and_b32 v3, 31, v2
    v_lshrrev_b32 v4, 5, v2
    """)
    a("v_readfirstlane_b32 s22, v1")
    a("s_waitcnt lgkmcnt(0)")
    a.srd(28, 8, 9, WS_W + 34*1024)
    for r in range(3):
        skip=a.newlabel("K1_WSK")
        a(f"s_add_u32 s23, s22, {16*r}")
        a("s_cmp_ge_u32 s23, 34")
        a(f"s_cbranch_scc1 {skip}")
        done=a.newlabel("K1_WSEL")
        for (lo,hi,base,khm,size) in ((0,8,14,32,8192),(8,16,20,32,8192),(16,18,16,8,2048),(18,26,12,32,8192),(26,34,18,32,8192)):
            nxt=a.newlabel("K1_WN")
            a(f"s_cmp_ge_u32 s23, {hi}")
            a(f"s_cbranch_scc1 {nxt}")
            a(f"s_mov_b32 s24, s{base}")
            a(f"s_and_b32 s25, s{base+1}, 0xffff")
            a(f"s_mov_b32 s26, {size}")
            a(f"s_mov_b32 s27, 0x20000")
            a(f"s_sub_u32 s33, s23, {lo}")
            a(f"s_mov_b32 s34, {khm*128}")
            a(f"s_branch {done}")
            a.label(nxt)
        a("s_endpgm")
        a.label(done)
        a("""
        s_lshr_b32 s35, s33, 1
        s_and_b32 s36, s33, 1
        s_lshl_b32 s35, s35, 10
        s_lshl_b32 s36, s36, 6
        s_add_u32 s35, s35, s36
        v_mul_lo_u32 v5, v4, s34
        v_lshl_add_u32 v5, v3, 1, v5
        """)
        for i in range(8):
            a(f"buffer_load_ushort v{8+i}, v5, s[24:27], s35 offen offset:{128*i}")
        a("s_lshl_b32 s37, s23, 10")
        a(f"s_add_u32 s37, s37, {WS_W}")
        a("v_lshlrev_b32 v6, 4, v2")
        a("s_waitcnt vmcnt(0)")
        a.c("pieces 0..7 (Wb) and 16,17 (Wc) are pre-scaled by -log2(e)")
        sc=a.newlabel("K1_WSC"); dn=a.newlabel("K1_WDN")
        a("s_cmp_lt_u32 s23, 8")
        a(f"s_cbranch_scc1 {sc}")
        a("s_sub_u32 s38, s23, 16")
        a("s_cmp_lt_u32 s38, 2")
        a(f"s_cbranch_scc1 {sc}")
        for i in range(4):
            a(f"v_lshl_or_b32 v{16+i}, v{9+2*i}, 16, v{8+2*i}")
        a(f"s_branch {dn}")
        a.label(sc)
        a("s_mov_b32 s38, 0xbfb8aa3b")
        for i in range(8):
            a(f"v_lshlrev_b32 v{8+i}, 16, v{8+i}")
            a(f"v_mul_f32 v{8+i}, s38, v{8+i}")
        for i in range(4):
            a(f"v_cvt_pk_bf16_f32 v{16+i}, v{8+2*i}, v{9+2*i}")
        a.label(dn)
        a("buffer_store_dwordx4 v[16:19], v6, s[28:31], s37 offen")
        a("s_nop 1")
        a.label(skip)
    a.label("K1_END")
    a("s_endpgm")
    return a.text(), kdesc(name, 64, 64, 64)
```

```python
from asmlib import *
from k1 import WS_SLOTS, WS_COMPACT, WS_W, CH
import os
N=12500; E=800000
NREC=1280
NTILE=154
OVF=0; TCTR=4; DESC=2144; LIST_S=3392; LIST_E=LIST_S+NTILE*64; NODE=LIST_E+NTILE*128
STAGE=(NODE+50*NREC+127)//128*128; K3_LDS=STAGE+65536
TROW=44
TAB=STAGE; XD=STAGE+4096; WAU=STAGE+12288; WMAIN=STAGE+32768
DESCN=(LIST_S-DESC)//16
LISTN=NTILE*192//16
assert DESC+(NTILE+1)*8<=LIST_S and K3_LDS<=163840, K3_LDS
assert LIST_E<65536
MAXG=2*NTILE-1
G=[16,48]; H=[32,64]; XX=[80,96]; AX=[112,116]; BX=[120,124]; EE=[128,132]
X=80; MK=96
XRD=136; CCH=140; KH16=144; LOFF=145; AS=146; AE=147; AD=148; VM=149
SRC4=150; EID=152; VD=153; NODEA=154; KM=155; NODEB=[157,159]; XEPI=160; RECO=164
CL2E=2; CONE=14; DEN=4; NUM=6; LOF4=1
LS=164; LE=165; LD=166; VCT=167
VONE=13
WB=0; WV=32; WC=64; AU=72
sXB=12; sEA=16; sWS=20; sOUT=24; sWAVE=28; sNODE0=29; sSTEP=30; sNT=31; sMODE=32; sST0=33; sST1=34; s128=35
sREC=40; sM=48; sT1=44; sT2=45; sT3=46; sOVF=47
STAMP=False
X_=set(os.environ.get('EXP','').split(','))
WS_STAMP=0xD00000

def mfma(d, a_, b_, c, bv=False):
    cs = "0" if c is None else vr(c,16)
    return f"v_mfma_f32_32x32x16_bf16 {vr(d,16)}, {vr(a_,4)}, {vr(b_,4) if bv else ar(b_,4)}, {cs}"

def valu_block(blk):
    g=G[blk]; h=H[blk]
    ex=[f"v_exp_f32 v{g+i}, v{g+i}" for i in range(16)]
    pk_a=[f"v_pk_add_f32 {vr(g+2*i,2)}, {vr(g+2*i,2)}, {vr(CONE,2)}" for i in range(8)]
    rc=[f"v_rcp_f32 v{g+i}, v{g+i}" for i in range(16)]
    acc=[f"v_pk_add_f32 {vr(DEN,2)}, {vr(g,2)}, {vr(g+2,2)}",
         f"v_pk_mul_f32 {vr(NUM,2)}, {vr(g,2)}, {vr(h,2)}",
         f"v_pk_fma_f32 {vr(NUM,2)}, {vr(g+2,2)}, {vr(h+2,2)}, {vr(NUM,2)}"]
    for i in range(2,8):
        acc.append(f"v_pk_add_f32 {vr(DEN,2)}, {vr(g+2*i,2)}, {vr(DEN,2)}")
        acc.append(f"v_pk_fma_f32 {vr(NUM,2)}, {vr(g+2*i,2)}, {vr(h+2*i,2)}, {vr(NUM,2)}")
    return ex,pk_a,rc,acc

def chain(blk, b):
    g=G[blk]; h=H[blk]; x=XX[b]
    o=[mfma(g, AX[b], BX[blk], None, bv=True), mfma(g, EE[b], WC+4*blk, g)]
    o+=[mfma(g, x+4*j, WB+4*(2*j+blk), g) for j in range(4)]
    o+=[mfma(h, x+4*j, WV+4*(2*j+blk), None if j==0 else h) for j in range(4)]
    return o

def addr_calc(b):
    return [f"v_mad_u32_u16 v8, v{SRC4}, s{s128}, v{CCH}",
            f"v_mad_u32_u16 v9, v{SRC4}, s{s128}, v{CCH+1} op_sel:[1,0,0,0]",
            f"v_mad_u32_u16 v10, v{SRC4+1}, s{s128}, v{CCH+2}",
            f"v_mad_u32_u16 v11, v{SRC4+1}, s{s128}, v{CCH+3} op_sel:[1,0,0,0]",
            f"v_lshl_add_u32 v12, v{EID}, 5, v{KH16}" if 'esame' not in X_ else f"v_mov_b32 v12, v{KH16}"]
def pad_flag(b):
    return f"v_and_b32_sdwa v{AX[b]+1}, v{EID}, v{KM} dst_sel:DWORD dst_unused:UNUSED_PAD src0_sel:WORD_1 src1_sel:DWORD"
def set_m0(b):
    return f"s_mov_b32 m0, s{sST0 if b==0 else sST1}"
def vmem_x():
    return [f"buffer_load_dwordx4 v{8+i}, {sr(sXB,4)}, 0 offen offset:{1024*i} lds" for i in range(4)]
def vmem_e(b):
    return f"buffer_load_dwordx4 {vr(EE[b],4)}, v12, {sr(sEA,4)}, 0 offen"
def issue_loads(b):
    if os.environ.get('VAR','0')=='4':
        return [set_m0(b)]+addr_calc(b)+[pad_flag(b),vmem_e(b)]+vmem_x()
    return [set_m0(b)]+addr_calc(b)+[pad_flag(b)]+vmem_x()+[vmem_e(b)]

def list_addr(sT):
    return [f"s_lshl_b32 s80, s{sT}, 6", f"s_lshl_b32 s81, s{sT}, 7",
            f"v_add_u32 v{AS}, s80, v{LS}", f"v_add_u32 v{AE}, s81, v{LE}"]
def desc_addr(sT):
    return [f"s_lshl_b32 s80, s{sT}, 3", f"v_add_u32 v{AD}, s80, v{LD}"]
def read_list():
    return [f"ds_read_b64 {vr(SRC4,2)}, v{AS} offset:{LIST_S}",
            f"ds_read_b32 v{EID}, v{AE} offset:{LIST_E}"]
def fetch_tile():
    return ["s_mov_b64 exec, 1", f"ds_add_rtn_u32 v{VCT}, v{LOF4}, v{VONE} offset:{TCTR}", "s_mov_b64 exec, -1"]

def node_addr(bn):
    return [f"v_add_u32_sdwa v{NODEA}, v{VD}, v{LOFF} dst_sel:DWORD dst_unused:UNUSED_PAD src0_sel:WORD_0 src1_sel:DWORD",
            f"v_add_u32 v{NODEB[bn]}, v{NODEA}, v{LOF4}"]
def read_x(bn):
    return [f"ds_read_b128 {vr(XX[bn]+4*j,4)}, v{XRD+j} offset:{32768*bn}" for j in range(4)]
def read_a(blk):
    return f"ds_read_b32 v{BX[blk]}, v{NODEA} offset:{128*blk}"

def flush(blk,b):
    return [f"v_add_f32 v8, v{DEN}, v{DEN+1}", f"v_add_f32 v9, v{NUM}, v{NUM+1}",
            f"v_cvt_f64_f32 v[10:11], v8",
            f"v_cvt_f64_f32 v[8:9], v9",
            f"ds_add_f64 v{NODEB[b]}, v[10:11] offset:{256+256*blk}",
            f"ds_add_f64 v{NODEB[b]}, v[8:9] offset:{768+256*blk}"]

def mix(trans, groups):
    o=[]; ti=0
    for pre,n in groups:
        o+=pre; o+=trans[ti:ti+n]; ti+=n
    assert ti==len(trans), (ti,len(trans))
    return o

def filt(o):
    if 'nomfma' in X_: o=[x for x in o if 'mfma' not in x]
    if 'nolds' in X_: o=[x for x in o if not x.startswith('ds_read')]
    return o

def weave(main, fill):
    o=[]
    for i,x in enumerate(main):
        o+=fill.get(i,[]); o.append(x)
    o+=fill.get(len(main),[])
    return o

def acc4(blk):
    g=G[blk]; h=H[blk]
    D2=8; N2=10
    o=[f"v_pk_add_f32 {vr(DEN,2)}, {vr(g,2)}, {vr(g+4,2)}",
       f"v_pk_mul_f32 {vr(NUM,2)}, {vr(g,2)}, {vr(h,2)}",
       f"v_pk_add_f32 {vr(D2,2)}, {vr(g+2,2)}, {vr(g+6,2)}",
       f"v_pk_mul_f32 {vr(N2,2)}, {vr(g+2,2)}, {vr(h+2,2)}",
       f"v_pk_fma_f32 {vr(NUM,2)}, {vr(g+4,2)}, {vr(h+4,2)}, {vr(NUM,2)}",
       f"v_pk_fma_f32 {vr(N2,2)}, {vr(g+6,2)}, {vr(h+6,2)}, {vr(N2,2)}"]
    for i in (4,6):
        o+=[f"v_pk_add_f32 {vr(DEN,2)}, {vr(g+2*i,2)}, {vr(DEN,2)}",
            f"v_pk_fma_f32 {vr(NUM,2)}, {vr(g+2*i,2)}, {vr(h+2*i,2)}, {vr(NUM,2)}",
            f"v_pk_add_f32 {vr(D2,2)}, {vr(g+2*i+2,2)}, {vr(D2,2)}",
            f"v_pk_fma_f32 {vr(N2,2)}, {vr(g+2*i+2,2)}, {vr(h+2*i+2,2)}, {vr(N2,2)}"]
    o+=[f"v_pk_add_f32 {vr(DEN,2)}, {vr(DEN,2)}, {vr(D2,2)}", f"v_pk_add_f32 {vr(NUM,2)}, {vr(NUM,2)}, {vr(N2,2)}"]
    return o

def phase(trans, mf, pat):
    o=[]; ti=0
    for k,n in enumerate(pat):
        o.append(mf[k]); o+=trans[ti:ti+n]; ti+=n
    assert ti==len(trans)
    return o
def idx_after(p, nth):
    c=-1
    for i,x in enumerate(p):
        if x.startswith("v_exp") or x.startswith("v_rcp"):
            c+=1
            if c==nth: return i+1
    raise

V=os.environ.get('VAR','0')
def tile_body(a, b):
    bn=b^1
    ex,pk_a,rc,acc=valu_block(0)
    mf=chain(1,b)
    ac=addr_calc(b); vx=vmem_x(); da=desc_addr(sT1); na=node_addr(bn); rx=read_x(bn)
    if 'novm' in X_: vx=["s_nop 0"]*4
    ve=vmem_e(b) if 'novm' not in X_ else "s_nop 0"
    w0=("s_waitcnt vmcnt(0) lgkmcnt(0)" if 'nowait' not in X_ else "s_waitcnt lgkmcnt(0)")
    rfl=f"v_readfirstlane_b32 s{sT3}, v{VCT}"
    fl0=(flush(0,b) if 'noflush' not in X_ else ["s_nop 0","s_nop 0"])
    fl1=(flush(1,b) if 'noflush' not in X_ else ["s_nop 0","s_nop 0"])
    dread=f"ds_read_b32 v{VD}, v{AD} offset:{DESC}"
    a.c(f"---- P0 parity {b}")
    a("s_waitcnt lgkmcnt(2)")
    pat=[3,3,3,3,4]
    pe=phase(ex,mf[:5],pat); pr=phase(rc,mf[5:],pat)
    if V in ('0','a4'):
        if V=='a4': acc=acc4(0)
        o=weave(pe,{1:[set_m0(b),da[0]]+fetch_tile(), 21:[da[1],ac[0],dread]})
        o+=ac[1:2]+pk_a+pr+[ac[2],ac[3],ac[4],pad_flag(b)]
        o+=weave(acc,{0:[w0]+vx[:1], 1:[rx[0]], 2:vx[1:2], 3:[rx[1]], 4:vx[2:3], 5:[rx[2]], 6:vx[3:4], 7:[rx[3]], 8:[ve]})
        o+=na+[rfl]+[read_a(0)]+fl0
    elif V=='4':
        wx=("s_waitcnt vmcnt(1) lgkmcnt(0)" if 'nowait' not in X_ else "s_waitcnt lgkmcnt(0)")
        o=weave(pe,{1:[set_m0(b),da[0]]+fetch_tile(), 5:[ac[4]], 6:[pad_flag(b)], 7:[ve], 21:[da[1],ac[0],dread]})
        o+=ac[1:2]+pk_a+pr+[ac[2],ac[3],"s_nop 0"]
        o+=weave(acc,{0:[wx]+vx[:1], 1:[rx[0]], 2:vx[1:2], 3:[rx[1]], 4:vx[2:3], 5:[rx[2]], 6:vx[3:4], 7:[rx[3]]})
        o+=na+[rfl]+[read_a(0)]+fl0
    elif V=='1':
        o=weave(pe,{1:[set_m0(b),da[0]]+fetch_tile(), 21:[da[1],ac[0],dread]})
        o+=ac[1:2]+pk_a
        f={}
        seq=[[ac[2]],[ac[3]],[ac[4],pad_flag(b)],[w0,vx[0]],[rx[0]],[vx[1]],[rx[1]],[vx[2]],[rx[2]],[vx[3]],[rx[3]],[ve]]
        for n,ins in enumerate(seq): f[idx_after(pr,n+1)]=ins
        o+=weave(pr,f)+["s_nop 0","s_nop 0"]
        o+=acc+na+[rfl]+[read_a(0)]+fl0
    elif V=='2':
        f={1:[set_m0(b),da[0]]+fetch_tile()}
        seq=[[ac[0]],[ac[1]],[ac[2]],[ac[3]],[ac[4]],["s_waitcnt vmcnt(0)",rx[0]],[rx[1]],[vx[0]],[rx[2]],[vx[1]],[rx[3]],[vx[2]],[vx[3]],[pad_flag(b)]]
        for n,ins in enumerate(seq): f.setdefault(idx_after(pe,n+1),[]); f[idx_after(pe,n+1)]+=ins
        f[21]=f.get(21,[])+[da[1],ve,dread]
        o=weave(pe,f)+pk_a+pr+["s_nop 0","s_nop 0"]
        o+=acc+["s_waitcnt lgkmcnt(0)"]+na+[rfl]+[read_a(0)]+fl0
    elif V=='3':
        o=weave(pe,{1:[set_m0(b),da[0]]+fetch_tile(), 21:[da[1],ac[0],dread]})
        o+=ac[1:2]+pk_a
        f={}
        seq=[[ac[2]],[ac[3]],[ac[4]],[pad_flag(b)],[],[vx[0]],[],[vx[1]],[],[vx[2]],[],[vx[3]],[],[ve]]
        for n,ins in enumerate(seq):
            if ins: f[idx_after(pr,n)]=ins
        o+=weave(pr,f)+["s_nop 0","s_nop 0"]
        o+=weave(acc,{0:["s_waitcnt vmcnt(5) lgkmcnt(0)"], 1:[rx[0]], 3:[rx[1]], 5:[rx[2]], 7:[rx[3]]})
        o+=na+[rfl]+[read_a(0)]+fl0
    for s in filt(o): a(s)
    ex,pk_a,rc,acc=valu_block(1)
    if V=='a4': acc=acc4(1)
    mf=chain(0,bn)
    la=list_addr(sT3)
    a.c(f"---- P1 parity {b}")
    pe=phase(ex,mf[:5],pat); pr=phase(rc,mf[5:],pat)
    o=["s_waitcnt lgkmcnt(2)"]+weave(pe,{1:la[:2]+[read_a(1)], 21:la[2:]})
    o+=weave(pk_a,{2:read_list()[:1],4:read_list()[1:]})
    o+=pr+["s_nop 0"]
    o+=acc+fl1
    for s in filt(o): a(s)
    a.c("rotate tile ring; continue while next tile < NT")
    a(f"s_cmp_lt_u32 s{sT1}, s{sNT}")
    a(f"s_mov_b32 s{sT1}, s{sT2}")
    a(f"s_mov_b32 s{sT2}, s{sT3}")

def pack_a(a):
    a("s_mov_b32 s81, 0xbfb8aa3b")
    for r in range(16):
        a(f"v_accvgpr_read_b32 v{64+r}, a{AU+r}")
    for r in range(16):
        a(f"v_mul_f32 v{64+r}, s81, v{64+r}")
    for r in range(16):
        a(f"v_cvt_pk_bf16_f32 v{32+r}, v{64+r}, v{64+r}")
    for r in range(16):
        a(f"v_lshlrev_b32 v{32+r}, 16, v{32+r}")
    for r in range(16):
        a(f"v_sub_f32 v{32+r}, v{64+r}, v{32+r}")
    for r in range(16):
        a(f"v_cvt_pk_bf16_f32 v{64+r}, v{64+r}, v{32+r}")

def node_zero(a):
    a("v_mov_b32 v4, 0")
    a(f"s_mul_i32 s80, s{sWAVE}, {NREC}")
    a(f"s_add_u32 m0, s80, {NODE+256}")
    a("s_nop 0")
    for i in range(6):
        for q in range(4):
            a(f"ds_write_addtid_b32 v4 offset:{8*NREC*i+256*q}")
    a(f"s_cmp_gt_u32 s{sWAVE}, 1")
    lab=a.newlabel("K3_NZ")
    a(f"s_cbranch_scc1 {lab}")
    for q in range(4):
        a(f"ds_write_addtid_b32 v4 offset:{8*NREC*6+256*q}")
    a(f"s_mov_b32 m0, {NODE}")
    a("s_nop 0")
    a("ds_write_addtid_b32 v4")
    a.label(lab)

def weights_read(a):
    a("v_and_b32 v9, 63, v0")
    a("v_lshlrev_b32 v9, 4, v9")
    a(f"v_add_u32 v9, {WMAIN}, v9")
    for p in range(18):
        a(f"ds_read_b128 {ar(4*p,4)}, v9 offset:{p*1024}")

def gen_k3(name):
    a=Asm()
    def stamp(nm):
        if STAMP and nm in STAMP:
            i=STAMP.index(nm)
            a(f"s_mem{'real' if nm.startswith('rt') else ''}time s[{88+2*i}:{89+2*i}]")
            a("s_waitcnt lgkmcnt(0)")
    def rec_offsets():
        a.c("record offsets: p=(64i+(t>>3)+b)&255 ; off=b*32768+p*128+(t&7)*16")
        a("""
        v_lshrrev_b32 v8, 3, v0
        v_and_b32 v9, 7, v0
        v_lshlrev_b32 v9, 4, v9
        s_lshl_b32 s37, s2, 15
        v_add_u32 v9, s37, v9
        v_add_u32 v10, s2, v8
        """)
        for i in range(4):
            a(f"v_add_u32 v11, {64*i}, v10")
            a("v_and_b32 v11, 255, v11")
            a(f"v_lshl_add_u32 v{RECO+i}, v11, 7, v9")
        a(f"s_movk_i32 s37, {CH}")
        a("v_mul_u32_u24 v3, s37, v8")
    a.raw(f".globl {name}\n.p2align 8\n.type {name},@function\n{name}:")
    a("s_cmp_ge_u32 s2, 256")
    a("s_cbranch_scc1 K3_END")
    stamp("start"); stamp("rt0")
    a("s_load_dwordx2 s[10:11], s[0:1], 88")
    a("s_load_dwordx4 s[4:7], s[0:1], 0")
    a("s_load_dwordx2 s[8:9], s[0:1], 72")
    a("v_lshrrev_b32 v1, 6, v0")
    a("v_and_b32 v13, 63, v0")
    a(f"v_readfirstlane_b32 s{sWAVE}, v1")
    a(f"s_mul_i32 s{sNODE0}, s2, 49")
    a(f"s_movk_i32 s{s128}, 128")
    a(f"s_mov_b32 s{sMODE}, 0")
    a(f"s_mov_b32 s{sOVF}, 0")
    a(f"s_mov_b32 s{sSTEP}, {64*CH}")
    rec_offsets()
    a.c("DMA chunk constants: lane=(p8,cpos): cA=(cpos^(p8>>1))*16 ; i odd: ^64 ; + 3072-1024*i")
    a("""
    v_lshrrev_b32 v10, 3, v13
    v_and_b32 v11, 7, v13
    v_lshrrev_b32 v12, 1, v10
    v_xor_b32 v11, v11, v12
    v_lshlrev_b32 v11, 4, v11
    """)
    for i in range(4):
        if i%2==1:
            a("v_xor_b32 v12, 64, v11"); a(f"v_add_u32 v{CCH+i}, {3072-1024*i}, v12")
        else:
            a(f"v_add_u32 v{CCH+i}, {3072-1024*i}, v11")
    a.c("x_dst DMA address: (node0+8v+p8)*128 + (cA ^ 64*(v&1)) + 3072")
    a(f"s_and_b32 s37, s{sWAVE}, 1")
    a("s_lshl_b32 s37, s37, 6")
    a("v_xor_b32 v11, s37, v11")
    a(f"s_lshl_b32 s38, s{sWAVE}, 3")
    a(f"s_add_u32 s38, s38, s{sNODE0}")
    a("v_add_u32 v10, s38, v10")
    a("v_lshl_add_u32 v10, v10, 7, v11")
    a(f"v_add_u32 v{EE[0]}, 3072, v10")
    a(f"v_lshlrev_b32 v{EE[0]+1}, 4, v13")
    a("v_lshrrev_b32 v8, 3, v0")
    a(f"v_add_u32 v8, s{sNODE0}, v8")
    a("v_lshlrev_b32 v8, 7, v8")
    a("v_and_b32 v9, 7, v0")
    a("v_lshl_add_u32 v8, v9, 4, v8")
    a(f"v_add_u32 v{EE[0]+2}, 3072, v8")
    a(f"s_lshl_b32 s80, s{sWAVE}, 12")
    a(f"s_add_u32 s{sST0}, s80, {STAGE}")
    a(f"s_add_u32 s{sST1}, s{sST0}, 32768")
    a.c("table (with histogram) zero + tile counter, then barrier A right after the record loads")
    a("v_mov_b32 v4, 0\nv_mov_b32 v5, 0\nv_mov_b32 v6, 0\nv_mov_b32 v7, 0")
    a("v_lshlrev_b32 v8, 4, v0")
    a(f"v_add_u32 v9, {TAB}, v8")
    a(f"v_cmp_gt_u32 vcc, {64*TROW//16}, v0")
    a("s_and_saveexec_b64 s[38:39], vcc")
    a("ds_write_b128 v9, v[4:7]")
    a("s_mov_b64 exec, s[38:39]")
    a(f"v_mov_b32 v9, {TCTR}")
    a("v_mov_b32 v8, 16")
    a("ds_write_b32 v9, v8")
    a("s_waitcnt lgkmcnt(0)")
    stamp("karg")
    a.c("---- SRDs + prologue loads")
    a.srd(sREC, 10, 11, WS_COMPACT)
    for i in range(4):
        a(f"buffer_load_dwordx4 {vr(16+4*i,4)}, v{RECO+i}, {sr(sREC,4)}, 0 offen")
    a("s_barrier")
    a(f"s_sub_u32 s{sXB}, s4, 3072")
    a(f"s_subb_u32 s{sXB+1}, s5, 0")
    a(f"s_and_b32 s{sXB+1}, s{sXB+1}, 0xffff")
    a(f"s_mov_b32 s{sXB+2}, {N*128+3072}")
    a(f"s_mov_b32 s{sXB+3}, 0x20000")
    a.srd(sWS, 10, 11, WS_W+34*1024)
    a.srd(sEA, 6, 7, E*32)
    a.srd(sOUT, 8, 9, N*128)
    stamp("issued")
    a("v_mov_b32 v4, 0")
    a(f"v_mov_b32 v8, {OVF}")
    a("ds_write_b32 v8, v4")
    a.c("---- per-lane constants for main loop")
    a("""
    v_and_b32 v8, 31, v13
    v_lshrrev_b32 v9, 5, v13
    v_bfe_u32 v10, v13, 1, 3
    v_lshlrev_b32 v11, 2, v9
    v_xor_b32 v10, v10, v11
    v_lshlrev_b32 v11, 7, v8
    """)
    a(f"v_add_u32 v11, s{sST0}, v11")
    for j in range(4):
        a(f"v_xor_b32 v12, {j}, v10")
        a(f"v_lshl_add_u32 v{XRD+j}, v12, 4, v11")
    a(f"v_lshlrev_b32 v{KH16}, 4, v9")
    a(f"v_lshlrev_b32 v{LOF4}, 2, v8")
    a(f"v_add_u32 v{LOFF}, {NODE}, v{LOF4}")
    a.c("ext-step operands: A side = group indicator / pad flag, B side = A entry / BIG")
    a("v_bfe_u32 v10, v8, 2, 1")
    a("v_cmp_eq_u32 vcc, v10, v9")
    a("v_mov_b32 v11, 0x3f803f80")
    a("v_mov_b32 v12, 0")
    a(f"v_cndmask_b32 v{AX[0]}, v12, v11, vcc")
    a(f"v_mov_b32 v{AX[1]}, v{AX[0]}")
    a("v_cmp_eq_u32 vcc, 0, v9")
    a("v_mov_b32 v11, 0x3f80")
    for q in (0,1):
        a(f"v_mov_b32 v{AX[q]+1}, 0"); a(f"v_mov_b32 v{AX[q]+2}, 0"); a(f"v_mov_b32 v{AX[q]+3}, 0")
        a(f"v_mov_b32 v{BX[q]+1}, 0x7149"); a(f"v_mov_b32 v{BX[q]+2}, 0"); a(f"v_mov_b32 v{BX[q]+3}, 0")
    a(f"v_cndmask_b32 v{KM}, v12, v11, vcc")
    a(f"v_mov_b32 v{CONE}, 1.0")
    a(f"v_mov_b32 v{CONE+1}, 1.0")
    def prefill(full):
        a("v_mov_b32 v4, -1")
        a(f"s_lshl_b32 s80, s{sWAVE}, 8")
        a(f"s_add_u32 m0, s80, {LIST_S}")
        a("s_nop 0")
        nl=NTILE*192//256
        for i in range((nl+1+7)//8):
            if (i+1)*8<=nl: a(f"ds_write_addtid_b32 v4 offset:{2048*i}")
            else:
                lab=a.newlabel("K3_PF")
                a(f"s_cmp_gt_u32 s{sWAVE}, {nl-8*i}")
                a(f"s_cbranch_scc1 {lab}")
                a(f"s_cmp_eq_u32 s{sWAVE}, {nl-8*i}")
                a("s_cselect_b32 exec_hi, 0, -1")
                a(f"ds_write_addtid_b32 v4 offset:{2048*i}")
                a("s_mov_b32 exec_hi, -1")
                a.label(lab)
        a("v_lshlrev_b32 v8, 4, v0")
        a("v_mov_b32 v4, 0\nv_mov_b32 v5, 0\nv_mov_b32 v6, 0\nv_mov_b32 v7, 0")
        a(f"v_cmp_gt_u32 vcc, {DESCN}, v0")
        a("s_and_saveexec_b64 s[38:39], vcc")
        a(f"ds_write_b128 v8, v[4:7] offset:{DESC}")
        a("s_mov_b64 exec, s[38:39]")
        if full:
            a(f"v_add_u32 v9, {TAB}, v8")
            a(f"v_cmp_gt_u32 vcc, {64*TROW//16}, v0")
            a("s_and_saveexec_b64 s[38:39], vcc")
            a("ds_write_b128 v9, v[4:7]")
            a("s_mov_b64 exec, s[38:39]")
            a(f"v_mov_b32 v9, {TCTR}")
            a("v_mov_b32 v10, 16")
            a("ds_write_b32 v9, v10")
            a("s_waitcnt lgkmcnt(0)")
            a("s_barrier")
    a.c("==== first pass: prefill lists / desc (needed only after barrier B), node records zero")
    prefill(False)
    node_zero(a)
    stamp("prefill")
    a.label("K3_HIST")
    a.c("==== histogram / rank")
    a("s_waitcnt vmcnt(0)")
    stamp("rec")
    a("v_mov_b32 v8, 1")
    a(f"v_mov_b32 v10, {TROW}")
    a(f"v_mov_b32 v11, {TAB}")
    a("v_mov_b32 v96, 0")
    a("s_mov_b32 s8, 0")
    a.c("a marker can only sit in slot 31 of a line")
    a("v_and_b32 v9, v19, v23") if False else None
    a("s_mov_b64 s[6:7], 0")
    for r in (3,7,11,15):
        a(f"v_and_b32 v9, 63, v{16+r}")
        a("v_cmp_eq_u32 vcc, 63, v9")
        a("s_or_b64 s[6:7], s[6:7], vcc")
    a("s_cmp_lg_u64 s[6:7], 0")
    a("s_cbranch_scc1 K3_INLINE")
    a.label("K3_INLINEDONE")
    for r in range(16):
        a(f"v_and_b32 v9, 63, v{16+r}")
        a(f"v_mad_u32_u24 v{32+r}, v9, v10, v11")
        a(f"v_cmp_ne_u32 s[{sM+2*r}:{sM+2*r+1}], 0, v9")
    a("v_and_b32 v9, 63, v96")
    a("v_mad_u32_u24 v97, v9, v10, v11")
    a("v_cmp_ne_u32 s[6:7], 0, v9")
    for r in range(16):
        a(f"s_mov_b64 exec, s[{sM+2*r}:{sM+2*r+1}]")
        a(f"ds_add_rtn_u32 v{48+r}, v{32+r}, v8 offset:40")
    a("s_mov_b64 exec, s[6:7]")
    a("ds_add_rtn_u32 v98, v97, v8 offset:40")
    a("s_mov_b64 exec, -1")
    a.c("first pass: x_dst rows / weights -> LDS, epilogue x rows")
    a(f"s_cmp_lg_u32 s{sMODE}, 0")
    a("s_cbranch_scc1 K3_NODMA")
    a(f"s_lshl_b32 s80, s{sWAVE}, 10")
    a(f"s_add_u32 m0, s80, {XD}")
    a("s_nop 0")
    a(f"buffer_load_dwordx4 v{EE[0]}, {sr(sXB,4)}, 0 offen lds")
    for r in range(5):
        skip=a.newlabel("K3_WSK")
        a(f"s_add_u32 s80, s{sWAVE}, {8*r}")
        if r==4:
            a("s_cmp_ge_u32 s80, 34")
            a(f"s_cbranch_scc1 {skip}")
        a("s_cmp_ge_u32 s80, 18")
        a(f"s_cselect_b32 s82, {(WAU-18*1024)-WMAIN & 0xffffffff}, 0")
        a("s_lshl_b32 s80, s80, 10")
        a("s_add_u32 s82, s82, s80")
        a(f"s_add_u32 m0, s82, {WMAIN}")
        a(f"s_add_u32 s80, s80, {WS_W}")
        a(f"buffer_load_dwordx4 v{EE[0]+1}, {sr(sWS,4)}, s80 offen lds")
        if r==4: a.label(skip)
    a(f"buffer_load_dwordx4 {vr(XEPI,4)}, v{EE[0]+2}, {sr(sXB,4)}, 0 offen")
    a.label("K3_NODMA")
    a.c("eid / src extraction while the atomics are in flight")
    for i in range(1,4):
        a(f"s_mul_i32 s80, s{sSTEP}, {i}")
        a(f"v_add_u32 v{80+i}, s80, v3")
    a("v_mov_b32 v80, v3")
    for r in range(16):
        a(f"v_bfe_u32 v{64+r}, v{16+r}, 6, 12")
        a(f"v_add_u32 v{64+r}, v{64+r}, v{80+r//4}")
    a("v_bfe_u32 v99, v96, 6, 12")
    a("v_add_u32 v99, s8, v99")
    a("s_waitcnt lgkmcnt(0)")
    a("s_barrier")
    stamp("hist")
    a.c("==== scan: wave v handles level j=v ; lane = d1")
    a(f"v_mad_u32_u24 v9, v13, v10, v11")
    a("ds_read_b32 v128, v9 offset:40")
    NPF=0
    if 'nopf' not in X_:
        a(f"s_cmp_lg_u32 s{sMODE}, 0")
        a("s_cbranch_scc1 K3_NOPF")
        a.c("warm-up while the sort runs: one slice of x into this XCD's L2, first rows of e_attr into the Infinity Cache (results unused)")
        a("v_lshlrev_b32 v12, 7, v0")
        a("s_lshr_b32 s80, s2, 3")
        a("s_mul_i32 s80, s80, 50048")
        a("s_add_u32 s80, s80, 3072")
        a("v_cmp_gt_u32 vcc, 0x187, v0")
        a("v_bfrev_b32 v156, 1")
        a("s_nop 0")
        a("v_cndmask_b32 v156, v156, v12, vcc")
        a(f"buffer_load_dword v156, v156, {sr(sXB,4)}, s80 offen")
        NPF=1
        EPF=int(os.environ.get('EPF','0'))
        if EPF:
            a(f"s_mul_i32 s80, s2, {EPF*128}")
            a(f"v_cmp_gt_u32 vcc, {EPF}, v0")
            a("v_bfrev_b32 v158, 1")
            a("s_nop 0")
            a("v_cndmask_b32 v158, v158, v12, vcc")
            a(f"buffer_load_dword v158, v158, {sr(sEA,4)}, s80 offen")
            NPF=2
    if 'nopf' not in X_: a.label("K3_NOPF")
    a("s_waitcnt lgkmcnt(0)")
    a(f"v_mul_u32_u24 v130, {NREC}, v13")
    a("v_readlane_b32 s87, v128, 63")
    a("v_cmp_gt_u32 vcc, 50, v13")
    a("s_nop 1")
    a("v_cndmask_b32 v128, 0, v128, vcc")
    a("v_add_u32 v129, 15, v128")
    a("v_lshrrev_b32 v129, 4, v129")
    MS=[4,6,8,10,82,84]
    a(f"s_mov_b32 s81, 0"); a("s_mov_b32 s86, 0")
    for j in range(8):
        a(f"v_cmp_lt_u32 s[4:5], {j}, v129")
        a("s_bcnt1_i32_b64 s80, s[4:5]")
        a(f"s_cmp_gt_u32 s{sWAVE}, {j}")
        a("s_cselect_b32 s36, s80, 0")
        a("s_add_u32 s81, s81, s80")
        a("s_add_u32 s86, s86, s36")
    a(f"v_cmp_lt_u32 s[4:5], s{sWAVE}, v129")
    a("v_cmp_lt_u32 vcc, 8, v129")
    a("s_mov_b32 s36, 0")
    a("s_cbranch_vccnz K3_TAIL")
    a.label("K3_TAILDONE")
    a(f"s_cmp_gt_u32 s81, {MAXG}")
    a("s_cbranch_scc1 K3_SPLIT")
    a("s_cmp_lg_u32 s87, 0")
    a("s_cbranch_scc1 K3_MARKERS")
    a.label("K3_MARKDONE")
    a("v_mbcnt_lo_u32_b32 v131, s4, 0")
    a("v_mbcnt_hi_u32_b32 v131, s5, v131")
    a(f"s_lshl_b32 s80, s{sWAVE}, 4")
    a("v_subrev_u32 v132, s80, v128")
    a("v_add_u32 v131, s86, v131")
    a("v_min_u32 v132, 16, v132")
    a("v_lshlrev_b32 v133, 2, v131")
    a("v_lshl_add_u32 v132, v132, 22, v130")
    a(f"v_subrev_u32 v131, s{sWAVE}, v131")
    a("v_lshlrev_b32 v131, 6, v131")
    a(f"s_lshl_b32 s80, s{sWAVE}, 2")
    a("v_add_u32 v9, s80, v9")
    a("ds_write_b32 v9, v131")
    a("s_mov_b64 exec, s[4:5]")
    a(f"ds_write_b32 v133, v132 offset:{DESC}")
    a("s_mov_b64 exec, -1")
    a("s_cmp_lg_u32 s36, 0")
    a("s_cbranch_scc1 K3_TAILDESC")
    a.label("K3_TAILDESCDONE")
    a("s_add_u32 s81, s81, 1")
    a(f"s_lshr_b32 s{sNT}, s81, 1")
    a.c("scatter part 1 (independent of the table)")
    a("s_cmp_lg_u32 s36, 0")
    a("s_cbranch_scc1 K3_CLAMP")
    for r in range(16):
        a(f"v_lshrrev_b32 v9, 2, v{48+r}")
        a(f"v_lshrrev_b32 v{16+r}, 18, v{16+r}")
        a("v_and_b32 v9, -4, v9")
        a(f"v_add_u32 v{32+r}, v9, v{32+r}")
    a.label("K3_CLAMPDONE")
    a("v_lshrrev_b32 v9, 4, v98")
    a("v_min_u32 v9, 8, v9")
    a("v_lshl_add_u32 v97, v9, 2, v97")
    a("v_lshrrev_b32 v96, 18, v96")
    a(f"s_waitcnt vmcnt({NPF}) lgkmcnt(0)")
    a("s_barrier")
    stamp("scan")
    a.c("==== scatter")
    a("ds_read_b32 v97, v97")
    for r in range(16):
        a(f"ds_read_b32 v{32+r}, v{32+r}")
    a.c("list lane parts")
    a("v_lshrrev_b32 v8, 3, v13")
    a(f"v_lshlrev_b32 v{LS}, 3, v8")
    a("""
    v_and_b32 v8, 7, v13
    v_bfe_u32 v9, v13, 3, 2
    v_lshl_add_u32 v8, v8, 2, v9
    """)
    a(f"v_lshlrev_b32 v{LE}, 2, v8")
    a("v_lshrrev_b32 v8, 5, v13")
    a(f"v_lshlrev_b32 v{LD}, 2, v8")
    for r in range(16):
        if r==0: a("s_waitcnt lgkmcnt(8)")
        if r==8: a("s_waitcnt lgkmcnt(8)") if False else a("s_waitcnt lgkmcnt(0)")
        a(f"v_lshl_add_u32 v{32+r}, v{48+r}, 2, v{32+r}")
        a(f"v_lshrrev_b32 v{48+r}, 1, v{32+r}")
    a("v_lshl_add_u32 v97, v98, 2, v97")
    a("v_lshrrev_b32 v98, 1, v97")
    for r in range(16):
        a(f"s_mov_b64 exec, s[{sM+2*r}:{sM+2*r+1}]")
        a(f"ds_write_b32 v{32+r}, v{64+r} offset:{LIST_E}")
        a(f"ds_write_b16 v{48+r}, v{16+r} offset:{LIST_S}")
    a("s_mov_b64 exec, s[6:7]")
    a(f"ds_write_b32 v97, v99 offset:{LIST_E}")
    a(f"ds_write_b16 v98, v96 offset:{LIST_S}")
    a("s_mov_b64 exec, -1")
    a(f"s_cmp_lg_u32 s{sMODE}, 0")
    a("s_cbranch_scc1 K3_NOOPR")
    a.c("node GEMM operands: A -> X regs (x_dst rows), B -> MK regs")
    a(f"s_bfe_u32 s38, s{sWAVE}, 0x10001")
    a("s_lshl_b32 s80, s38, 12")
    a(f"s_add_u32 s80, s80, {XD}")
    a(f"s_sub_u32 s80, s80, s{sST0}")
    for j in range(4):
        a(f"v_add_u32 v12, s80, v{XRD+j}")
        a(f"ds_read_b128 {vr(X+4*j,4)}, v12")
    a(f"s_and_b32 s37, s{sWAVE}, 1")
    a(f"s_lshr_b32 s39, s{sWAVE}, 2")
    a("s_lshl_b32 s80, s37, 13")
    a("s_lshl_b32 s81, s39, 10")
    a("s_add_u32 s80, s80, s81")
    a(f"s_add_u32 s80, s80, {WAU}")
    a("v_lshlrev_b32 v12, 4, v13")
    a("v_add_u32 v12, s80, v12")
    for j in range(4):
        a(f"ds_read_b128 {vr(MK+4*j,4)}, v12 offset:{j*2048}")
    a.label("K3_NOOPR")
    a(f"v_mov_b32 v{VONE}, 1")
    a(f"s_mov_b32 s{sT1}, s{sWAVE}")
    a(f"s_add_u32 s{sT2}, s{sWAVE}, 8")
    for s in list_addr(sT1): a(s)
    a("s_waitcnt lgkmcnt(0)")
    a("s_barrier")
    stamp("main")
    a.c("==== pipeline prologue: tile T0 = wave, T1 = wave+8, then dynamic")
    for s in read_list(): a(s)
    for s in desc_addr(sT1): a(s)
    a(f"ds_read_b32 v{VD}, v{AD} offset:{DESC}")
    for s in fetch_tile(): a(s)
    a("s_waitcnt lgkmcnt(2)")
    for s in issue_loads(0): a(s)
    for s in list_addr(sT2): a(s)
    for s in read_list(): a(s)
    a(f"s_cmp_lg_u32 s{sMODE}, 0")
    a("s_cbranch_scc1 K3_NOW")
    a.c("node GEMM -> a[72:87]; main weights -> a[0:71]")
    for j in range(4):
        c = "0" if j==0 else ar(AU,16)
        a(f"v_mfma_f32_32x32x16_bf16 {ar(AU,16)}, {vr(X+4*j,4)}, {vr(MK+4*j,4)}, {c}")
    weights_read(a)
    a(f"s_and_b32 s37, s{sWAVE}, 1")
    a("s_cmp_eq_u32 s37, 1")
    a("s_cbranch_scc1 K3_NOW")
    a.c("A waves: Aneg = -log2e * D -> node records")
    a(f"s_bfe_u32 s38, s{sWAVE}, 0x10001")
    a(f"s_lshr_b32 s39, s{sWAVE}, 2")
    a(f"s_mul_i32 s80, s38, {32*NREC}")
    a("s_lshl_b32 s81, s39, 7")
    a("s_add_u32 s80, s80, s81")
    a(f"s_add_u32 s80, s80, {NREC}")
    a("v_bfe_u32 v9, v0, 5, 1")
    a(f"v_mul_u32_u24 v9, {4*NREC}, v9")
    a(f"v_add_u32 v10, v9, v{LOFF}")
    a("v_add_u32 v10, s80, v10")
    a("s_nop 7")
    pack_a(a)
    lab=a.newlabel("K3_NW"); end=a.newlabel("K3_NWE")
    for r in range(8):
        a(f"ds_write_b32 v10, v{64+r} offset:{((r&3)+8*(r>>2))*NREC}")
    a("s_cmp_eq_u32 s38, 1")
    a(f"s_cbranch_scc1 {lab}")
    for r in range(8,16):
        a(f"ds_write_b32 v10, v{64+r} offset:{((r&3)+8*(r>>2))*NREC}")
    a(f"s_branch {end}")
    a.label(lab)
    a("s_mov_b32 exec_hi, 0")
    a(f"ds_write_b32 v10, v72 offset:{16*NREC}")
    a("s_mov_b32 exec_hi, -1")
    a.label(end)
    a.label("K3_NOW")
    a("s_waitcnt lgkmcnt(0)")
    a("s_barrier")
    stamp("wread")
    for s in issue_loads(1): a(s)
    a(f"v_readfirstlane_b32 s{sT3}, v{VCT}")
    for s in list_addr(sT3): a(s)
    for s in read_list(): a(s)
    a(f"s_cmp_ge_u32 s{sT1}, s{sNT}")
    a("s_cbranch_scc1 K3_BATCHEND")
    a.c("ring: current = T1(old) ; next = T2 ; next2 = T3")
    a(f"s_mov_b32 s{sT1}, s{sT2}")
    a(f"s_mov_b32 s{sT2}, s{sT3}")
    a("s_waitcnt vmcnt(5)")
    for s in node_addr(0): a(s)
    for s in read_x(0): a(s)
    a(read_a(0)); a(read_a(1))
    a("s_waitcnt lgkmcnt(0)")
    for s in chain(0,0): a(s)
    a("s_nop 7"); a("s_nop 7")
    if 'prio47' in X_ or 'prio03' in X_:
        a(f"s_cmp_ge_u32 s{sWAVE}, 4")
        a("s_cbranch_scc0 K3_NOPRIO" if 'prio47' in X_ else "s_cbranch_scc1 K3_NOPRIO")
        a("s_setprio 1")
        a.label("K3_NOPRIO")
    stamp("pipe")
    al=os.environ.get('ALIGN')
    if al:
        p,off=al.split(':')
        a(f".p2align {p}")
        for _ in range(int(off)//4): a("s_nop 0")
    else: a(".p2align 3")
    a.label("K3_LOOP")
    tile_body(a,0)
    a("s_cbranch_scc0 K3_BATCHEND")
    tile_body(a,1)
    a("s_cbranch_scc1 K3_LOOP")
    a.label("K3_BATCHEND")
    a("s_waitcnt vmcnt(0) lgkmcnt(0)")
    stamp("loopend")
    a.c("U waves park their U tile in their own stage area")
    a(f"s_and_b32 s37, s{sWAVE}, 1")
    a("s_cmp_eq_u32 s37, 0")
    a("s_cbranch_scc1 K3_NOU")
    a("v_bfe_u32 v9, v0, 5, 1")
    a("v_lshlrev_b32 v9, 9, v9")
    a(f"v_add_u32 v9, v9, v{LOF4}")
    a(f"v_add_u32 v9, s{sST0}, v9")
    for r in range(16):
        a(f"ds_write_b32 v9, a{AU+r} offset:{((r&3)+8*(r>>2))*128}")
    a.label("K3_NOU")
    a("v_cmp_gt_u32 vcc, 0x188, v0")
    a("v_lshrrev_b32 v16, 3, v0")
    a("v_and_b32 v17, 7, v0")
    a(f"v_mul_u32_u24 v10, {NREC}, v16")
    a("v_lshl_add_u32 v10, v17, 6, v10")
    a(f"v_add_u32 v10, {NODE+NREC}, v10")
    a("v_lshrrev_b32 v11, 5, v16")
    a("v_lshrrev_b32 v12, 2, v17")
    a("v_lshlrev_b32 v11, 13, v11")
    a("v_lshl_add_u32 v11, v12, 14, v11")
    a("v_and_b32 v12, 31, v16")
    a("v_lshl_add_u32 v11, v12, 7, v11")
    a("v_and_b32 v12, 3, v17")
    a("v_lshl_add_u32 v11, v12, 5, v11")
    a(f"v_add_u32 v11, {STAGE+4096}, v11")
    a("s_waitcnt lgkmcnt(0)")
    a("s_barrier")
    a.c("==== next batch?  mode 1: second half next ; overflow segments if any marker was seen")
    a(f"s_cmp_eq_u32 s{sMODE}, 1")
    a("s_cbranch_scc1 K3_HALF2")
    a(f"s_cmp_eq_u32 s{sOVF}, 0")
    a("s_cbranch_scc1 K3_EPI")
    a(f"v_mov_b32 v8, {OVF}")
    a("ds_read_b32 v9, v8")
    a("s_waitcnt lgkmcnt(0)")
    a("v_readfirstlane_b32 s80, v9")
    a("s_nop 3")
    a("s_cmp_eq_u32 s80, 0")
    a("s_cbranch_scc1 K3_EPI")
    a("s_lshl_b32 s81, s80, 2")
    a(f"s_add_u32 s81, s81, {OVF+12}")
    a("v_mov_b32 v8, s81")
    a("ds_read_b32 v9, v8")
    a("s_waitcnt lgkmcnt(0)")
    a("v_readfirstlane_b32 s82, v9")
    a("s_barrier")
    a("s_sub_u32 s80, s80, 1")
    a(f"v_mov_b32 v8, {OVF}")
    a("v_mov_b32 v9, s80")
    a("ds_write_b32 v8, v9")
    a("s_lshr_b32 s83, s82, 24")
    a("s_bfe_u32 s84, s82, 0xc000c")
    a("s_and_b32 s85, s82, 0xfff")
    a(f"s_mul_i32 s86, s83, {CH*4}")
    a(f"s_add_u32 s86, s86, {WS_COMPACT}")
    a("s_lshl_b32 s84, s84, 2")
    a("s_add_u32 s86, s86, s84")
    a("s_lshl_b32 s85, s85, 2")
    a(f"s_add_u32 s{sREC+2}, s86, s85")
    a(f"s_mul_i32 s83, s83, {CH}")
    a("v_mov_b32 v3, s83")
    a(f"s_mov_b32 s{sSTEP}, 0")
    a(f"s_mov_b32 s{sMODE}, 3")
    a("v_lshlrev_b32 v8, 4, v0")
    a("v_add_u32 v8, s86, v8")
    for i in range(4):
        a(f"buffer_load_dwordx4 {vr(16+4*i,4)}, v8, {sr(sREC,4)}, 0 offen")
        if i<3: a("v_add_u32 v8, 8192, v8")
    a("v_and_b32 v13, 63, v0")
    a("s_waitcnt vmcnt(0)")
    a("s_branch K3_BATCH")
    a.label("K3_INLINE")
    a(f"s_cmp_eq_u32 s{sMODE}, 3")
    a("s_cbranch_scc1 K3_INLINEDONE")
    for q,r in enumerate((3,7,11,15)):
        nxt=a.newlabel("K3_IN")
        a(f"v_and_b32 v9, 63, v{16+r}")
        a("v_cmp_eq_u32 vcc, 63, v9")
        a(f"s_cbranch_vccz {nxt}")
        a("s_ff1_i32_b64 s80, vcc")
        a("s_nop 3")
        a(f"v_readlane_b32 s81, v{16+r}, s80")
        a("s_lshr_b32 s82, s81, 18")
        a("s_cmp_gt_u32 s82, 64")
        a(f"s_cbranch_scc1 {nxt}")
        a("s_lshr_b32 s83, s80, 3")
        a(f"s_lshl_b32 s84, s{sWAVE}, 3")
        a("s_add_u32 s83, s83, s84")
        a(f"s_add_u32 s83, s83, {64*q}")
        a(f"s_mul_i32 s8, s83, {CH}")
        a("s_bfe_u32 s84, s81, 0xc0006")
        a("s_add_u32 s84, s84, s8")
        a("s_lshl_b32 s84, s84, 2")
        a(f"s_add_u32 s84, s84, {WS_COMPACT}")
        a("s_lshl_b32 s82, s82, 2")
        a(f"s_add_u32 s{sREC+2}, s84, s82")
        a("v_lshlrev_b32 v9, 2, v13")
        a("v_add_u32 v9, s84, v9")
        a(f"buffer_load_dword v96, v9, {sr(sREC,4)}, 0 offen")
        a("s_mov_b32 m0, s80")
        a("v_mov_b32 v9, 0")
        a("s_nop 0")
        a(f"v_writelane_b32 v{16+r}, 0, m0")
        a("s_waitcnt vmcnt(0)")
        a(f"s_mov_b32 s{sREC+2}, {WS_COMPACT}")
        a("s_branch K3_INLINEDONE")
        a.label(nxt)
    a("s_branch K3_INLINEDONE")
    a.label("K3_CLAMP")
    for r in range(16):
        a(f"v_lshrrev_b32 v9, 4, v{48+r}")
        a("v_min_u32 v9, 8, v9")
        a(f"v_lshl_add_u32 v{32+r}, v9, 2, v{32+r}")
        a(f"v_lshrrev_b32 v{16+r}, 18, v{16+r}")
    a("s_branch K3_CLAMPDONE")
    a.label("K3_BATCH")
    prefill(True)
    a("s_branch K3_HIST")
    a.label("K3_SPLIT")
    a("s_waitcnt vmcnt(0) lgkmcnt(0)")
    a("s_barrier")
    a.c("node GEMM operands: A -> X regs (x_dst rows), B -> MK regs")
    a(f"s_bfe_u32 s38, s{sWAVE}, 0x10001")
    a("s_lshl_b32 s80, s38, 12")
    a(f"s_add_u32 s80, s80, {XD}")
    a(f"s_sub_u32 s80, s80, s{sST0}")
    for j in range(4):
        a(f"v_add_u32 v12, s80, v{XRD+j}")
        a(f"ds_read_b128 {vr(X+4*j,4)}, v12")
    a(f"s_and_b32 s37, s{sWAVE}, 1")
    a(f"s_lshr_b32 s39, s{sWAVE}, 2")
    a("s_lshl_b32 s80, s37, 13")
    a("s_lshl_b32 s81, s39, 10")
    a("s_add_u32 s80, s80, s81")
    a(f"s_add_u32 s80, s80, {WAU}")
    a("v_lshlrev_b32 v12, 4, v13")
    a("v_add_u32 v12, s80, v12")
    for j in range(4):
        a(f"ds_read_b128 {vr(MK+4*j,4)}, v12 offset:{j*2048}")
    a("s_waitcnt lgkmcnt(0)")
    a.c("first pass also has to finish the one-time work (node GEMM, weights) that the restart skips")
    for j in range(4):
        c = "0" if j==0 else ar(AU,16)
        a(f"v_mfma_f32_32x32x16_bf16 {ar(AU,16)}, {vr(X+4*j,4)}, {vr(MK+4*j,4)}, {c}")
    weights_read(a)
    a(f"s_and_b32 s37, s{sWAVE}, 1")
    a("s_cmp_eq_u32 s37, 1")
    a("s_cbranch_scc1 K3_SPLIT2")
    a(f"s_bfe_u32 s38, s{sWAVE}, 0x10001")
    a(f"s_lshr_b32 s39, s{sWAVE}, 2")
    a(f"s_mul_i32 s80, s38, {32*NREC}")
    a("s_lshl_b32 s81, s39, 7")
    a("s_add_u32 s80, s80, s81")
    a(f"s_add_u32 s80, s80, {NREC}")
    a("v_bfe_u32 v9, v0, 5, 1")
    a(f"v_mul_u32_u24 v9, {4*NREC}, v9")
    a(f"v_add_u32 v10, v9, v{LOFF}")
    a("v_add_u32 v10, s80, v10")
    a("s_nop 7")
    pack_a(a)
    lab=a.newlabel("K3_NW"); end=a.newlabel("K3_NWE")
    for r in range(8):
        a(f"ds_write_b32 v10, v{64+r} offset:{((r&3)+8*(r>>2))*NREC}")
    a("s_cmp_eq_u32 s38, 1")
    a(f"s_cbranch_scc1 {lab}")
    for r in range(8,16):
        a(f"ds_write_b32 v10, v{64+r} offset:{((r&3)+8*(r>>2))*NREC}")
    a(f"s_branch {end}")
    a.label(lab)
    a("s_mov_b32 exec_hi, 0")
    a(f"ds_write_b32 v10, v72 offset:{16*NREC}")
    a("s_mov_b32 exec_hi, -1")
    a.label(end)
    a.label("K3_SPLIT2")
    a("s_waitcnt lgkmcnt(0)")
    a("s_barrier")
    a(f"s_mov_b32 s{sMODE}, 1")
    for i in range(2):
        a(f"buffer_load_dwordx4 {vr(16+4*i,4)}, v{RECO+i}, {sr(sREC,4)}, 0 offen")
    for r in range(8,16): a(f"v_mov_b32 v{16+r}, 0")
    a("s_waitcnt vmcnt(0)")
    a("s_branch K3_BATCH")
    a.label("K3_HALF2")
    a(f"s_mov_b32 s{sMODE}, 2")
    rec_offsets()
    for i in range(2,4):
        a(f"buffer_load_dwordx4 {vr(16+4*i,4)}, v{RECO+i}, {sr(sREC,4)}, 0 offen")
    for r in range(8): a(f"v_mov_b32 v{16+r}, 0")
    a("v_and_b32 v13, 63, v0")
    a("s_waitcnt vmcnt(0) lgkmcnt(0)")
    a("s_branch K3_BATCH")
    a.label("K3_MARKERS")
    a(f"s_mov_b32 s{sOVF}, 1")
    a("v_lshrrev_b32 v8, 3, v0")
    a("v_mov_b32 v10, 1")
    a(f"v_mov_b32 v11, {OVF}")
    a(f"s_mov_b32 s80, {TAB+63*TROW}")
    for r in range(16):
        lab=a.newlabel("K3_MK")
        a(f"v_cmp_eq_u32 vcc, s80, v{32+r}")
        a(f"s_and_b64 vcc, vcc, s[{sM+2*r}:{sM+2*r+1}]")
        a(f"s_cbranch_vccz {lab}")
        a(f"s_andn2_b64 s[{sM+2*r}:{sM+2*r+1}], s[{sM+2*r}:{sM+2*r+1}], vcc")
        a("s_mov_b64 exec, vcc")
        a("ds_add_rtn_u32 v134, v11, v10")
        a(f"v_add_u32 v12, {64*(r//4)}, v8")
        a("v_lshlrev_b32 v12, 24, v12")
        a(f"v_bfe_u32 v135, v{16+r}, 6, 12")
        a("v_lshl_add_u32 v12, v135, 12, v12")
        a(f"v_lshrrev_b32 v135, 18, v{16+r}")
        a("v_add_u32 v12, v135, v12")
        a("s_waitcnt lgkmcnt(0)")
        a("v_lshlrev_b32 v134, 2, v134")
        a(f"ds_write_b32 v134, v12 offset:{OVF+16}")
        a("s_mov_b64 exec, -1")
        a.label(lab)
    a("s_branch K3_MARKDONE")
    a.label("K3_TAIL")
    a("v_subrev_u32 v134, 8, v129")
    a("v_max_i32 v134, 0, v134")
    a("v_mov_b32 v135, v134")
    for sh in (1,2,4,8):
        a("s_nop 1")
        a(f"v_add_u32_dpp v135, v135, v135 row_shr:{sh} row_mask:0xf bank_mask:0xf bound_ctrl:0")
    a("s_nop 1")
    a("v_add_u32_dpp v135, v135, v135 row_bcast:15 row_mask:0xa bank_mask:0xf")
    a("s_nop 1")
    a("v_add_u32_dpp v135, v135, v135 row_bcast:31 row_mask:0xc bank_mask:0xf")
    a("s_nop 1")
    a("v_readlane_b32 s80, v135, 63")
    a("v_sub_u32 v135, v135, v134")
    a("v_add_u32 v135, s81, v135")
    a("v_subrev_u32 v149, 8, v135")
    a("v_lshlrev_b32 v149, 6, v149")
    a("ds_write_b32 v9, v149 offset:32")
    a("s_add_u32 s81, s81, s80")
    a("s_mov_b32 s36, 1")
    a("s_branch K3_TAILDONE")
    a.label("K3_TAILDESC")
    a("s_mov_b32 s36, 8")
    a.label("K3_TLOOP")
    a("v_cmp_lt_u32 vcc, s36, v129")
    a("s_cbranch_vccz K3_TAILDESCDONE")
    a("s_lshl_b32 s80, s36, 4")
    a("v_subrev_u32 v132, s80, v128")
    a("v_min_u32 v132, 16, v132")
    a("v_lshl_add_u32 v132, v132, 22, v130")
    a("s_sub_u32 s80, s36, 8")
    a("v_add_u32 v133, s80, v135")
    a("v_lshlrev_b32 v133, 2, v133")
    a("s_mov_b64 exec, vcc")
    a(f"ds_write_b32 v133, v132 offset:{DESC}")
    a("s_mov_b64 exec, -1")
    a("s_add_u32 s36, s36, 1")
    a("s_branch K3_TLOOP")
    a.label("K3_EPI")
    a("s_and_saveexec_b64 s[38:39], vcc")
    a("s_cbranch_execz K3_END")
    a("ds_read_b128 v[24:27], v11")
    a("ds_read_b128 v[28:31], v11 offset:16")
    for q in range(4):
        a(f"ds_read_b128 {vr(48+4*q,4)}, v10 offset:{256+16*q}")
        a(f"ds_read_b128 {vr(64+4*q,4)}, v10 offset:{768+16*q}")
    a(f"v_add_u32 v8, s{sNODE0}, v16")
    a("v_lshlrev_b32 v8, 7, v8")
    a("v_lshl_add_u32 v8, v17, 4, v8")
    a("s_mov_b32 s80, 0x358637bd")
    a("s_waitcnt lgkmcnt(0)")
    for i in range(8): a(f"v_cvt_f32_f64 v{32+i}, {vr(48+2*i,2)}")
    for i in range(8): a(f"v_cvt_f32_f64 v{40+i}, {vr(64+2*i,2)}")
    for i in range(8): a(f"v_add_f32 v{32+i}, s80, v{32+i}")
    for i in range(8): a(f"v_rcp_f32 v{32+i}, v{32+i}")
    a("s_nop 0")
    for i in range(8): a(f"v_fma_f32 v{24+i}, v{40+i}, v{32+i}, v{24+i}")
    for i in range(8): a(f"v_max_f32 v{24+i}, 0, v{24+i}")
    for i in range(4):
        a(f"v_lshlrev_b32 v40, 16, v{XEPI+i}")
        a(f"v_and_b32 v41, 0xffff0000, v{XEPI+i}")
        a(f"v_add_f32 v{24+2*i}, v40, v{24+2*i}")
        a(f"v_add_f32 v{25+2*i}, v41, v{25+2*i}")
    for i in range(4):
        a(f"v_cvt_pk_bf16_f32 v{44+i}, v{24+2*i}, v{25+2*i}")
    a(f"buffer_store_dwordx4 v[44:47], v8, {sr(sOUT,4)}, 0 offen")
    if STAMP:
        a("s_waitcnt vmcnt(0)")
        stamp("end"); stamp("rt1")
        a("v_and_b32 v9, 63, v0")
        a("v_cmp_eq_u32 vcc, 0, v9")
        a("s_and_b64 exec, exec, vcc")
        a("s_cbranch_execz K3_END")
        a(f"s_mov_b32 s{sREC+2}, {WS_STAMP+256*8*64}")
        a(f"s_lshl_b32 s80, s2, 3")
        a(f"s_add_u32 s80, s80, s{sWAVE}")
        a(f"s_lshl_b32 s80, s80, 6")
        a(f"s_add_u32 s80, s80, {WS_STAMP}")
        a("v_mov_b32 v8, s80")
        for i in range(len(STAMP)):
            a(f"v_mov_b32 v16, s{88+2*i}")
            a(f"v_mov_b32 v17, s{89+2*i}")
            a(f"buffer_store_dwordx2 v[16:17], v8, {sr(sREC,4)}, 0 offen offset:{8*i}")
            a("s_nop 1")
        if os.environ.get('DBGOUT'):
            a.c("dev only: stamps of workgroup 100 wave 0 into d_debug")
            a("s_cmp_eq_u32 s2, 100")
            a("s_cbranch_scc0 K3_END")
            a(f"s_cmp_eq_u32 s{sWAVE}, 0")
            a("s_cbranch_scc0 K3_END")
            a("s_load_dwordx2 s[4:5], s[0:1], 80")
            a("s_waitcnt lgkmcnt(0)")
            a("s_mov_b32 s8, s4\ns_and_b32 s9, s5, 0xffff\ns_mov_b32 s10, 256\ns_mov_b32 s11, 0x20000")
            a("v_mov_b32 v8, 0")
            for i in range(len(STAMP)):
                if STAMP[i].startswith('rt'): a(f"v_mov_b32 v16, s{88+2*i}")
                else:
                    a(f"s_sub_u32 s80, s{88+2*i}, s88"); a("v_mov_b32 v16, s80")
                a(f"buffer_store_dword v16, v8, s[8:11], 0 offen offset:{4*i}")
                a("s_nop 1")
    a.label("K3_END")
    a("s_endpgm")
    return a.text(), kdesc(name, 256, 102, 168)
```

```python
from asmlib import *
N=12500; E=800000; CH=3125; BN=49
WS_SLOTS=0; WS_COMPACT=0x800000; WS_W=0xC00000
K1_LINES=0; K1_CNT=32768; K1_FLAG=32768+1024; K1_START=32768+2048; K1_LDS=32768+4096

import os
STAMP1=os.environ['STAMP1'].split(',') if os.environ.get('STAMP1') else False
WS_STAMP1=0xE00000
def gen_k1(name="bucket_kernel"):
    a=Asm()
    def stamp(nm):
        if STAMP1 and nm in STAMP1:
            i=STAMP1.index(nm)
            a(f"s_mem{'real' if nm.startswith('rt') else ''}time s[{48+2*i}:{49+2*i}]")
            a("s_waitcnt lgkmcnt(0)")
    a.raw(f".globl {name}\n.p2align 8\n.type {name},@function\n{name}:")
    a("s_cmp_gt_u32 s2, 256")
    a("s_cbranch_scc1 K1_END")
    stamp("start"); stamp("rt0")
    a("s_load_dwordx4 s[4:7], s[0:1], 16")
    a("s_load_dwordx2 s[8:9], s[0:1], 88")
    a("s_cmp_eq_u32 s2, 256")
    a("s_cbranch_scc1 K1_WEIGHTS")
    a.c("zero LDS lines + counters")
    a("""
    v_lshlrev_b32 v1, 4, v0
    v_mov_b32 v4, 0
    v_mov_b32 v5, 0
    v_mov_b32 v6, 0
    v_mov_b32 v7, 0
    v_lshlrev_b32 v2, 2, v0
    ds_write_b128 v1, v[4:7]
    ds_write_b128 v1, v[4:7] offset:16384
    """)
    a(f"ds_write_b32 v2, v4 offset:{K1_CNT}")
    a(f"s_mul_i32 s10, s2, {CH*4}")
    a(f"s_sub_u32 s11, {E*4}, s10")
    a(f"s_min_u32 s11, s11, {CH*4}")
    a("s_waitcnt lgkmcnt(0)")
    stamp("karg")
    a.c("SRDs: dst s[12:15], src s[16:19], ws s[20:23]")
    a("""
    s_add_u32 s12, s6, s10
    s_addc_u32 s13, s7, 0
    s_and_b32 s13, s13, 0xffff
    s_mov_b32 s14, s11
    s_mov_b32 s15, 0x20000
    s_add_u32 s16, s4, s10
    s_addc_u32 s17, s5, 0
    s_and_b32 s17, s17, 0xffff
    s_mov_b32 s18, s11
    s_mov_b32 s19, 0x20000
    buffer_load_dwordx4 v[8:11], v1, s[12:15], 0 offen
    buffer_load_dwordx4 v[12:15], v1, s[16:19], 0 offen
    """)
    a.srd(20, 8, 9, WS_COMPACT + 256*CH*4)
    PF=int(os.environ.get('PF','0'))
    a("s_barrier")
    if PF:
        a.c("waves 13..15 hold no edges: they touch the first PF*256 lines of e_attr (streaming, results unused)")
        a("v_lshrrev_b32 v60, 6, v0")
        a("s_nop 0")
        a("v_readfirstlane_b32 s43, v60")
        a("s_nop 3")
        a("s_cmp_lt_u32 s43, 13")
        a("s_cbranch_scc1 K1_NOPF")
        a("s_load_dwordx2 s[40:41], s[0:1], 8")
        a(f"s_mul_i32 s42, s2, {PF*128}")
        a("v_subrev_u32 v60, 832, v0")
        a("v_lshlrev_b32 v61, 7, v60")
        a("s_waitcnt lgkmcnt(0)")
        a("s_mov_b32 s44, s40")
        a("s_and_b32 s45, s41, 0xffff")
        a(f"s_mov_b32 s46, {E*32}")
        a("s_mov_b32 s47, 0x20000")
        for r in range((PF+191)//192):
            n=min(PF-192*r,192)
            if n<192:
                a(f"v_cmp_gt_u32 vcc, {n}, v60")
                a("s_and_b64 exec, exec, vcc")
            a(f"buffer_load_dword v{32+r}, v61, s[44:47], s42 offen")
            a("s_add_u32 s42, s42, 24576")
        a("s_mov_b64 exec, -1")
        for k in range(4): a(f"s_mov_b64 s[{24+2*k}:{25+2*k}], 0")
        a("s_branch K1_NOFLAG")
        a.label("K1_NOPF")
    a.c("eloc_k = 4*tid+k ; valid masks s[24+2k:25+2k]")
    a("v_lshlrev_b32 v3, 2, v0")
    for k in range(4):
        a(f"v_add_u32 v{16+k}, {k}, v3")
    for k in range(4):
        a(f"v_cmp_gt_u32 s[{24+2*k}:{25+2*k}], s14, v{16+k}") if False else None
    a("s_lshr_b32 s11, s11, 2")
    for k in range(4):
        a(f"v_cmp_gt_u32 s[{24+2*k}:{25+2*k}], s11, v{16+k}")
    a("v_mov_b32 v40, 1")
    a("s_movk_i32 s10, 21400")
    stamp("bar1")
    a("s_waitcnt vmcnt(1)")
    stamp("dst")
    for k in range(4):
        a(f"v_mul_u32_u24 v{20+k}, s10, v{8+k}")
    for k in range(4):
        a(f"v_lshrrev_b32 v{20+k}, 20, v{20+k}")
    for k in range(4):
        a(f"v_mul_u32_u24 v{24+k}, 49, v{20+k}")
        a(f"v_lshlrev_b32 v{28+k}, 2, v{20+k}")
    for k in range(4):
        a(f"s_mov_b64 exec, s[{24+2*k}:{25+2*k}]")
        a(f"ds_add_rtn_u32 v{32+k}, v{28+k}, v40 offset:{K1_CNT}")
    a("s_mov_b64 exec, -1")
    for k in range(4):
        a(f"v_sub_u32 v{24+k}, v{8+k}, v{24+k}")
        a(f"v_lshl_add_u32 v{16+k}, v{16+k}, 6, v{24+k}")
    a("s_waitcnt vmcnt(0)")
    for k in range(4):
        a(f"v_lshl_add_u32 v{16+k}, v{12+k}, 18, v{16+k}")
        a(f"v_add_u32 v{16+k}, 1, v{16+k}")
        a(f"v_lshlrev_b32 v{24+k}, 7, v{20+k}")
    a("s_waitcnt lgkmcnt(0)")
    a.c("slot = rank + (rank >= 15): slot 15 is reserved for the 'second half present' marker")
    for k in range(4):
        a(f"v_cmp_lt_u32 vcc, 14, v{32+k}")
        a("s_nop 1")
        a(f"v_addc_co_u32 v36, vcc, 0, v{32+k}, vcc")
        a(f"v_lshl_add_u32 v{24+k}, v36, 2, v{24+k}")
    a("s_mov_b64 s[34:35], 0")
    for k in range(4):
        a(f"v_cmp_gt_u32 vcc, 31, v{32+k}")
        a(f"s_and_b64 exec, vcc, s[{24+2*k}:{25+2*k}]")
        a(f"ds_write_b32 v{24+k}, v{16+k}")
        a(f"s_andn2_b64 s[36:37], s[{24+2*k}:{25+2*k}], vcc")
        a("s_or_b64 s[34:35], s[34:35], s[36:37]")
        a("s_mov_b64 exec, -1")
    a.c("any overflow in this wave -> set flag")
    a("s_cmp_eq_u64 s[34:35], 0")
    a("s_cbranch_scc1 K1_NOFLAG")
    a(f"v_mov_b32 v41, {K1_FLAG}")
    a("ds_write_b32 v41, v40")
    a.label("K1_NOFLAG")
    a("s_waitcnt lgkmcnt(0)")
    stamp("scat")
    a("s_barrier")
    stamp("bar2")
    a(f"v_mov_b32 v41, {K1_FLAG}")
    a("ds_read_b32 v42, v41")
    a.c("thread t copies piece t&3 of the first and of the second half of line b = t>>2")
    a("""
    v_lshrrev_b32 v52, 2, v0
    v_and_b32 v53, 3, v0
    v_lshlrev_b32 v56, 7, v52
    v_lshl_add_u32 v56, v53, 4, v56
    v_lshlrev_b32 v57, 2, v52
    """)
    a("ds_read_b128 v[44:47], v56")
    a("ds_read_b128 v[48:51], v56 offset:64")
    a(f"ds_read_b32 v43, v57 offset:{K1_CNT}")
    a("""
    v_add_u32 v54, s2, v52
    v_and_b32 v54, 255, v54
    v_lshlrev_b32 v54, 6, v54
    v_lshl_add_u32 v54, v53, 4, v54
    v_lshl_add_u32 v54, v52, 14, v54
    v_add_u32 v55, 0x400000, v54
    v_cmp_eq_u32 s[40:41], 3, v53
    """)
    a("s_waitcnt lgkmcnt(3)")
    a("v_readfirstlane_b32 s10, v42")
    a("s_nop 3")
    a("s_cmp_lg_u32 s10, 0")
    a("s_cbranch_scc1 K1_SLOW")
    a.label("K1_COPY")
    a("s_waitcnt lgkmcnt(0)")
    fl=os.environ.get('K1ST','sc1')
    a("v_cmp_lt_u32 vcc, 15, v43")
    a("s_and_b64 s[42:43], vcc, s[40:41]")
    a("v_mov_b32 v58, 62")
    a("s_nop 0")
    a("v_cndmask_b32 v47, v47, v58, s[42:43]")
    a(f"buffer_store_dwordx4 v[44:47], v54, s[20:23], 0 offen {fl}")
    a("s_and_saveexec_b64 s[42:43], vcc")
    a("s_cbranch_execz K1_NOHI")
    a(f"buffer_store_dwordx4 v[48:51], v55, s[20:23], 0 offen {fl}")
    a.label("K1_NOHI")
    a("s_mov_b64 exec, s[42:43]")
    if STAMP1:
        a("s_waitcnt vmcnt(0)")
        stamp("end"); stamp("rt1")
        a("v_and_b32 v9, 63, v0")
        a("v_cmp_eq_u32 vcc, 0, v9")
        a("s_and_b64 exec, exec, vcc")
        a(f"s_mov_b32 s22, {WS_STAMP1+256*16*64}")
        a("v_lshrrev_b32 v8, 6, v0")
        a("v_lshlrev_b32 v8, 6, v8")
        a("s_lshl_b32 s10, s2, 10")
        a(f"s_add_u32 s10, s10, {WS_STAMP1}")
        a("v_add_u32 v8, s10, v8")
        for i in range(len(STAMP1)):
            a(f"v_mov_b32 v16, s{48+2*i}")
            a(f"v_mov_b32 v17, s{49+2*i}")
            a(f"buffer_store_dwordx2 v[16:17], v8, s[20:23], 0 offen offset:{8*i}")
            a("s_nop 1")
        if os.environ.get('DBGOUT'):
            a("s_mov_b64 exec, 1")
            a("s_cmp_eq_u32 s2, 100")
            a("s_cbranch_scc0 K1_END")
            a("v_lshrrev_b32 v8, 6, v0")
            a("s_nop 0")
            a("v_readfirstlane_b32 s10, v8")
            a("s_nop 3")
            a("s_cmp_eq_u32 s10, 0")
            a("s_cbranch_scc0 K1_END")
            a("s_load_dwordx2 s[4:5], s[0:1], 80")
            a("s_waitcnt lgkmcnt(0)")
            a("s_mov_b32 s8, s4\ns_and_b32 s9, s5, 0xffff\ns_mov_b32 s10, 256\ns_mov_b32 s11, 0x20000")
            a("v_mov_b32 v8, 0")
            for i in range(len(STAMP1)):
                if STAMP1[i].startswith('rt'): a(f"v_mov_b32 v16, s{48+2*i}")
                else:
                    a(f"s_sub_u32 s12, s{48+2*i}, s48"); a("v_mov_b32 v16, s12")
                a(f"buffer_store_dword v16, v8, s[8:11], 0 offen offset:{32+4*i}")
                a("s_nop 1")
    a("s_endpgm")
    a.label("K1_SLOW")
    a.c("lines with more than 31 records keep 30 of them; slot 31 becomes a marker pointing at the rest in the compact list")
    a("s_waitcnt lgkmcnt(0)")
    a("v_cmp_gt_u32 vcc, 0x100, v0")
    a("s_and_saveexec_b64 s[38:39], vcc")
    a("s_cbranch_execz K1_S1")
    a(f"ds_read_b32 v57, v2 offset:{K1_CNT}")
    a("s_waitcnt lgkmcnt(0)")
    a("v_cmp_lt_u32 vcc, 31, v57")
    a("s_and_b64 exec, exec, vcc")
    a("s_cbranch_execz K1_S1")
    a("v_subrev_u32 v57, 30, v57")
    a(f"v_mov_b32 v58, {K1_FLAG+4}")
    a("ds_add_rtn_u32 v56, v58, v57")
    a("v_lshlrev_b32 v58, 7, v0")
    a("s_waitcnt lgkmcnt(0)")
    a(f"ds_write_b32 v2, v56 offset:{K1_START}")
    a("v_lshlrev_b32 v59, 6, v56")
    a("v_lshl_add_u32 v59, v57, 18, v59")
    a("v_or_b32 v59, 63, v59")
    a("ds_write_b32 v58, v59 offset:124")
    a.label("K1_S1")
    a("s_mov_b64 exec, -1")
    a("s_waitcnt lgkmcnt(0)")
    a("s_barrier")
    a(f"s_mul_i32 s10, s2, {CH*4}")
    a(f"s_add_u32 s10, s10, {WS_COMPACT}")
    for k in range(4):
        lab=a.newlabel("K1_SK")
        a(f"v_cmp_lt_u32 vcc, 29, v{32+k}")
        a(f"s_and_b64 exec, vcc, s[{24+2*k}:{25+2*k}]")
        a(f"s_cbranch_execz {lab}")
        a(f"ds_read_b32 v57, v{28+k} offset:{K1_CNT}")
        a(f"ds_read_b32 v58, v{28+k} offset:{K1_START}")
        a("s_waitcnt lgkmcnt(0)")
        a("v_cmp_lt_u32 vcc, 31, v57")
        a("s_and_b64 exec, exec, vcc")
        a(f"s_cbranch_execz {lab}")
        a(f"v_add_u32 v58, v58, v{32+k}")
        a("v_subrev_u32 v58, 30, v58")
        a("v_lshlrev_b32 v58, 2, v58")
        a(f"buffer_store_dword v{16+k}, v58, s[20:23], s10 offen")
        a.label(lab)
        a("s_mov_b64 exec, -1")
    a("v_lshrrev_b32 v52, 2, v0")
    a("v_and_b32 v53, 3, v0")
    a("v_lshlrev_b32 v56, 7, v52")
    a("v_lshl_add_u32 v56, v53, 4, v56")
    a("ds_read_b128 v[48:51], v56 offset:64")
    a("s_branch K1_COPY")
    a.label("K1_WEIGHTS")
    a("s_load_dwordx8 s[12:19], s[0:1], 32")
    a("s_load_dwordx2 s[20:21], s[0:1], 64")
    a("""
    v_lshrrev_b32 v1, 6, v0
    v_and_b32 v2, 63, v0
    v_and_b32 v3, 31, v2
    v_lshrrev_b32 v4, 5, v2
    """)
    a("v_readfirstlane_b32 s22, v1")
    a("s_waitcnt lgkmcnt(0)")
    a.srd(28, 8, 9, WS_W + 34*1024)
    for r in range(3):
        skip=a.newlabel("K1_WSK")
        a(f"s_add_u32 s23, s22, {16*r}")
        a("s_cmp_ge_u32 s23, 34")
        a(f"s_cbranch_scc1 {skip}")
        done=a.newlabel("K1_WSEL")
        for (lo,hi,base,khm,size) in ((0,8,14,32,8192),(8,16,20,32,8192),(16,18,16,8,2048),(18,26,12,32,8192),(26,34,18,32,8192)):
            nxt=a.newlabel("K1_WN")
            a(f"s_cmp_ge_u32 s23, {hi}")
            a(f"s_cbranch_scc1 {nxt}")
            a(f"s_mov_b32 s24, s{base}")
            a(f"s_and_b32 s25, s{base+1}, 0xffff")
            a(f"s_mov_b32 s26, {size}")
            a(f"s_mov_b32 s27, 0x20000")
            a(f"s_sub_u32 s33, s23, {lo}")
            a(f"s_mov_b32 s34, {khm*128}")
            a(f"s_branch {done}")
            a.label(nxt)
        a("s_endpgm")
        a.label(done)
        a("""
        s_lshr_b32 s35, s33, 1
        s_and_b32 s36, s33, 1
        s_lshl_b32 s35, s35, 10
        s_lshl_b32 s36, s36, 6
        s_add_u32 s35, s35, s36
        v_mul_lo_u32 v5, v4, s34
        v_lshl_add_u32 v5, v3, 1, v5
        """)
        for i in range(8):
            a(f"buffer_load_ushort v{8+i}, v5, s[24:27], s35 offen offset:{128*i}")
        a("s_lshl_b32 s37, s23, 10")
        a(f"s_add_u32 s37, s37, {WS_W}")
        a("v_lshlrev_b32 v6, 4, v2")
        a("s_waitcnt vmcnt(0)")
        a.c("pieces 0..7 (Wb) and 16,17 (Wc) are pre-scaled by -log2(e)")
        sc=a.newlabel("K1_WSC"); dn=a.newlabel("K1_WDN")
        a("s_cmp_lt_u32 s23, 8")
        a(f"s_cbranch_scc1 {sc}")
        a("s_sub_u32 s38, s23, 16")
        a("s_cmp_lt_u32 s38, 2")
        a(f"s_cbranch_scc1 {sc}")
        for i in range(4):
            a(f"v_lshl_or_b32 v{16+i}, v{9+2*i}, 16, v{8+2*i}")
        a(f"s_branch {dn}")
        a.label(sc)
        a("s_mov_b32 s38, 0xbfb8aa3b")
        for i in range(8):
            a(f"v_lshlrev_b32 v{8+i}, 16, v{8+i}")
            a(f"v_mul_f32 v{8+i}, s38, v{8+i}")
        for i in range(4):
            a(f"v_cvt_pk_bf16_f32 v{16+i}, v{8+2*i}, v{9+2*i}")
        a.label(dn)
        a("buffer_store_dwordx4 v[16:19], v6, s[28:31], s37 offen")
        a("s_nop 1")
        a.label(skip)
    a.label("K1_END")
    a("s_endpgm")
    return a.text(), kdesc(name, 64, 64, 64)
```

```python
from asmlib import *
from k1 import WS_SLOTS, WS_COMPACT, WS_W, CH
import os
N=12500; E=800000
NREC=1280
NTILE=154
OVF=0; TCTR=4; DESC=2144; LIST_S=3392; LIST_E=LIST_S+NTILE*64; NODE=LIST_E+NTILE*128
STAGE=(NODE+50*NREC+127)//128*128; K3_LDS=STAGE+65536
TROW=44
TAB=STAGE; XD=STAGE+4096; WAU=STAGE+12288; WMAIN=STAGE+32768
DESCN=(LIST_S-DESC)//16
LISTN=NTILE*192//16
assert DESC+(NTILE+1)*8<=LIST_S and K3_LDS<=163840, K3_LDS
assert LIST_E<65536
MAXG=2*NTILE-1
G=[16,48]; H=[32,64]; XX=[80,96]; AX=[112,116]; BX=[120,124]; EE=[128,132]
X=80; MK=96
XRD=136; CCH=140; KH16=144; LOFF=145; AS=146; AE=147; AD=148; VM=149
SRC4=150; EID=152; VD=153; NODEA=154; KM=155; NODEB=[157,159]; XEPI=160; RECO=164
CL2E=2; CONE=14; DEN=4; NUM=6; LOF4=1
LS=164; LE=165; LD=166; VCT=167
VONE=13
WB=0; WV=32; WC=64; AU=72
sXB=12; sEA=16; sWS=20; sOUT=24; sWAVE=28; sNODE0=29; sSTEP=30; sNT=31; sMODE=32; sST0=33; sST1=34; s128=35
sREC=40; sM=48; sT1=44; sT2=45; sT3=46; sOVF=47
STAMP=False
X_=set(os.environ.get('EXP','').split(','))
WS_STAMP=0xD00000

def mfma(d, a_, b_, c, bv=False):
    cs = "0" if c is None else vr(c,16)
    return f"v_mfma_f32_32x32x16_bf16 {vr(d,16)}, {vr(a_,4)}, {vr(b_,4) if bv else ar(b_,4)}, {cs}"

def valu_block(blk):
    g=G[blk]; h=H[blk]
    ex=[f"v_exp_f32 v{g+i}, v{g+i}" for i in range(16)]
    pk_a=[f"v_pk_add_f32 {vr(g+2*i,2)}, {vr(g+2*i,2)}, {vr(CONE,2)}" for i in range(8)]
    rc=[f"v_rcp_f32 v{g+i}, v{g+i}" for i in range(16)]
    acc=[f"v_pk_add_f32 {vr(DEN,2)}, {vr(g,2)}, {vr(g+2,2)}",
         f"v_pk_mul_f32 {vr(NUM,2)}, {vr(g,2)}, {vr(h,2)}",
         f"v_pk_fma_f32 {vr(NUM,2)}, {vr(g+2,2)}, {vr(h+2,2)}, {vr(NUM,2)}"]
    for i in range(2,8):
        acc.append(f"v_pk_add_f32 {vr(DEN,2)}, {vr(g+2*i,2)}, {vr(DEN,2)}")
        acc.append(f"v_pk_fma_f32 {vr(NUM,2)}, {vr(g+2*i,2)}, {vr(h+2*i,2)}, {vr(NUM,2)}")
    return ex,pk_a,rc,acc

def chain(blk, b):
    g=G[blk]; h=H[blk]; x=XX[b]
    o=[mfma(g, AX[b], BX[blk], None, bv=True), mfma(g, EE[b], WC+4*blk, g)]
    o+=[mfma(g, x+4*j, WB+4*(2*j+blk), g) for j in range(4)]
    o+=[mfma(h, x+4*j, WV+4*(2*j+blk), None if j==0 else h) for j in range(4)]
    return o

def addr_calc(b):
    return [f"v_mad_u32_u16 v8, v{SRC4}, s{s128}, v{CCH}",
            f"v_mad_u32_u16 v9, v{SRC4}, s{s128}, v{CCH+1} op_sel:[1,0,0,0]",
            f"v_mad_u32_u16 v10, v{SRC4+1}, s{s128}, v{CCH+2}",
            f"v_mad_u32_u16 v11, v{SRC4+1}, s{s128}, v{CCH+3} op_sel:[1,0,0,0]",
            f"v_lshl_add_u32 v12, v{EID}, 5, v{KH16}" if 'esame' not in X_ else f"v_mov_b32 v12, v{KH16}"]
def pad_flag(b):
    return f"v_and_b32_sdwa v{AX[b]+1}, v{EID}, v{KM} dst_sel:DWORD dst_unused:UNUSED_PAD src0_sel:WORD_1 src1_sel:DWORD"
def set_m0(b):
    return f"s_mov_b32 m0, s{sST0 if b==0 else sST1}"
def vmem_x():
    fx=os.environ.get('FX','')
    return [f"buffer_load_dwordx4 v{8+i}, {sr(sXB,4)}, 0 offen offset:{1024*i} {fx} lds".replace("  "," ") for i in range(4)]
def vmem_e(b):
    return f"buffer_load_dwordx4 {vr(EE[b],4)}, v12, {sr(sEA,4)}, 0 offen {os.environ.get('FE','')}"
def issue_loads(b):
    if os.environ.get('VAR','0')=='4':
        return [set_m0(b)]+addr_calc(b)+[pad_flag(b),vmem_e(b)]+vmem_x()
    return [set_m0(b)]+addr_calc(b)+[pad_flag(b)]+vmem_x()+[vmem_e(b)]

def list_addr(sT):
    return [f"s_lshl_b32 s80, s{sT}, 6", f"s_lshl_b32 s81, s{sT}, 7",
            f"v_add_u32 v{AS}, s80, v{LS}", f"v_add_u32 v{AE}, s81, v{LE}"]
def desc_addr(sT):
    return [f"s_lshl_b32 s80, s{sT}, 3", f"v_add_u32 v{AD}, s80, v{LD}"]
def read_list():
    return [f"ds_read_b64 {vr(SRC4,2)}, v{AS} offset:{LIST_S}",
            f"ds_read_b32 v{EID}, v{AE} offset:{LIST_E}"]
def fetch_tile():
    return ["s_mov_b64 exec, 1", f"ds_add_rtn_u32 v{VCT}, v{LOF4}, v{VONE} offset:{TCTR}", "s_mov_b64 exec, -1"]

def node_addr(bn):
    return [f"v_add_u32_sdwa v{NODEA}, v{VD}, v{LOFF} dst_sel:DWORD dst_unused:UNUSED_PAD src0_sel:WORD_0 src1_sel:DWORD",
            f"v_add_u32 v{NODEB[bn]}, v{NODEA}, v{LOF4}"]
def read_x(bn):
    return [f"ds_read_b128 {vr(XX[bn]+4*j,4)}, v{XRD+j} offset:{32768*bn}" for j in range(4)]
def read_a(blk):
    return f"ds_read_b32 v{BX[blk]}, v{NODEA} offset:{128*blk}"

def flush(blk,b):
    return [f"v_add_f32 v8, v{DEN}, v{DEN+1}", f"v_add_f32 v9, v{NUM}, v{NUM+1}",
            f"v_cvt_f64_f32 v[10:11], v8",
            f"v_cvt_f64_f32 v[8:9], v9",
            f"ds_add_f64 v{NODEB[b]}, v[10:11] offset:{256+256*blk}",
            f"ds_add_f64 v{NODEB[b]}, v[8:9] offset:{768+256*blk}"]

def mix(trans, groups):
    o=[]; ti=0
    for pre,n in groups:
        o+=pre; o+=trans[ti:ti+n]; ti+=n
    assert ti==len(trans), (ti,len(trans))
    return o

def filt(o):
    if 'nomfma' in X_: o=[x for x in o if 'mfma' not in x]
    if 'nolds' in X_: o=[x for x in o if not x.startswith('ds_read')]
    return o

def weave(main, fill):
    o=[]
    for i,x in enumerate(main):
        o+=fill.get(i,[]); o.append(x)
    o+=fill.get(len(main),[])
    return o

def acc4(blk):
    g=G[blk]; h=H[blk]
    D2=8; N2=10
    o=[f"v_pk_add_f32 {vr(DEN,2)}, {vr(g,2)}, {vr(g+4,2)}",
       f"v_pk_mul_f32 {vr(NUM,2)}, {vr(g,2)}, {vr(h,2)}",
       f"v_pk_add_f32 {vr(D2,2)}, {vr(g+2,2)}, {vr(g+6,2)}",
       f"v_pk_mul_f32 {vr(N2,2)}, {vr(g+2,2)}, {vr(h+2,2)}",
       f"v_pk_fma_f32 {vr(NUM,2)}, {vr(g+4,2)}, {vr(h+4,2)}, {vr(NUM,2)}",
       f"v_pk_fma_f32 {vr(N2,2)}, {vr(g+6,2)}, {vr(h+6,2)}, {vr(N2,2)}"]
    for i in (4,6):
        o+=[f"v_pk_add_f32 {vr(DEN,2)}, {vr(g+2*i,2)}, {vr(DEN,2)}",
            f"v_pk_fma_f32 {vr(NUM,2)}, {vr(g+2*i,2)}, {vr(h+2*i,2)}, {vr(NUM,2)}",
            f"v_pk_add_f32 {vr(D2,2)}, {vr(g+2*i+2,2)}, {vr(D2,2)}",
            f"v_pk_fma_f32 {vr(N2,2)}, {vr(g+2*i+2,2)}, {vr(h+2*i+2,2)}, {vr(N2,2)}"]
    o+=[f"v_pk_add_f32 {vr(DEN,2)}, {vr(DEN,2)}, {vr(D2,2)}", f"v_pk_add_f32 {vr(NUM,2)}, {vr(NUM,2)}, {vr(N2,2)}"]
    return o

def phase(trans, mf, pat):
    o=[]; ti=0
    for k,n in enumerate(pat):
        o.append(mf[k]); o+=trans[ti:ti+n]; ti+=n
    assert ti==len(trans)
    return o
def idx_after(p, nth):
    c=-1
    for i,x in enumerate(p):
        if x.startswith("v_exp") or x.startswith("v_rcp"):
            c+=1
            if c==nth: return i+1
    raise

V=os.environ.get('VAR','0')
def tile_body(a, b):
    bn=b^1
    ex,pk_a,rc,acc=valu_block(0)
    mf=chain(1,b)
    ac=addr_calc(b); vx=vmem_x(); da=desc_addr(sT1); na=node_addr(bn); rx=read_x(bn)
    if 'novm' in X_: vx=["s_nop 0"]*4
    ve=vmem_e(b) if 'novm' not in X_ else "s_nop 0"
    w0=("s_waitcnt vmcnt(0) lgkmcnt(0)" if 'nowait' not in X_ else "s_waitcnt lgkmcnt(0)")
    rfl=f"v_readfirstlane_b32 s{sT3}, v{VCT}"
    fl0=(flush(0,b) if 'noflush' not in X_ else ["s_nop 0","s_nop 0"])
    fl1=(flush(1,b) if 'noflush' not in X_ else ["s_nop 0","s_nop 0"])
    dread=f"ds_read_b32 v{VD}, v{AD} offset:{DESC}"
    a.c(f"---- P0 parity {b}")
    a("s_waitcnt lgkmcnt(2)")
    pat=[3,3,3,3,4]
    pe=phase(ex,mf[:5],pat); pr=phase(rc,mf[5:],pat)
    if V in ('0','a4'):
        if V=='a4': acc=acc4(0)
        o=weave(pe,{1:[set_m0(b),da[0]]+fetch_tile(), 21:[da[1],ac[0],dread]})
        o+=ac[1:2]+pk_a+pr+[ac[2],ac[3],ac[4],pad_flag(b)]
        o+=weave(acc,{0:[w0]+vx[:1], 1:[rx[0]], 2:vx[1:2], 3:[rx[1]], 4:vx[2:3], 5:[rx[2]], 6:vx[3:4], 7:[rx[3]], 8:[ve]})
        o+=na+[rfl]+[read_a(0)]+fl0
    elif V=='4':
        wx=("s_waitcnt vmcnt(1) lgkmcnt(0)" if 'nowait' not in X_ else "s_waitcnt lgkmcnt(0)")
        o=weave(pe,{1:[set_m0(b),da[0]]+fetch_tile(), 5:[ac[4]], 6:[pad_flag(b)], 7:[ve], 21:[da[1],ac[0],dread]})
        o+=ac[1:2]+pk_a+pr+[ac[2],ac[3],"s_nop 0"]
        o+=weave(acc,{0:[wx]+vx[:1], 1:[rx[0]], 2:vx[1:2], 3:[rx[1]], 4:vx[2:3], 5:[rx[2]], 6:vx[3:4], 7:[rx[3]]})
        o+=na+[rfl]+[read_a(0)]+fl0
    elif V=='1':
        o=weave(pe,{1:[set_m0(b),da[0]]+fetch_tile(), 21:[da[1],ac[0],dread]})
        o+=ac[1:2]+pk_a
        f={}
        seq=[[ac[2]],[ac[3]],[ac[4],pad_flag(b)],[w0,vx[0]],[rx[0]],[vx[1]],[rx[1]],[vx[2]],[rx[2]],[vx[3]],[rx[3]],[ve]]
        for n,ins in enumerate(seq): f[idx_after(pr,n+1)]=ins
        o+=weave(pr,f)+["s_nop 0","s_nop 0"]
        o+=acc+na+[rfl]+[read_a(0)]+fl0
    elif V=='2':
        f={1:[set_m0(b),da[0]]+fetch_tile()}
        seq=[[ac[0]],[ac[1]],[ac[2]],[ac[3]],[ac[4]],["s_waitcnt vmcnt(0)",rx[0]],[rx[1]],[vx[0]],[rx[2]],[vx[1]],[rx[3]],[vx[2]],[vx[3]],[pad_flag(b)]]
        for n,ins in enumerate(seq): f.setdefault(idx_after(pe,n+1),[]); f[idx_after(pe,n+1)]+=ins
        f[21]=f.get(21,[])+[da[1],ve,dread]
        o=weave(pe,f)+pk_a+pr+["s_nop 0","s_nop 0"]
        o+=acc+["s_waitcnt lgkmcnt(0)"]+na+[rfl]+[read_a(0)]+fl0
    elif V=='3':
        o=weave(pe,{1:[set_m0(b),da[0]]+fetch_tile(), 21:[da[1],ac[0],dread]})
        o+=ac[1:2]+pk_a
        f={}
        seq=[[ac[2]],[ac[3]],[ac[4]],[pad_flag(b)],[],[vx[0]],[],[vx[1]],[],[vx[2]],[],[vx[3]],[],[ve]]
        for n,ins in enumerate(seq):
            if ins: f[idx_after(pr,n)]=ins
        o+=weave(pr,f)+["s_nop 0","s_nop 0"]
        o+=weave(acc,{0:["s_waitcnt vmcnt(5) lgkmcnt(0)"], 1:[rx[0]], 3:[rx[1]], 5:[rx[2]], 7:[rx[3]]})
        o+=na+[rfl]+[read_a(0)]+fl0
    for s in filt(o): a(s)
    ex,pk_a,rc,acc=valu_block(1)
    if V=='a4': acc=acc4(1)
    mf=chain(0,bn)
    la=list_addr(sT3)
    a.c(f"---- P1 parity {b}")
    pe=phase(ex,mf[:5],pat); pr=phase(rc,mf[5:],pat)
    o=["s_waitcnt lgkmcnt(2)"]+weave(pe,{1:la[:2]+[read_a(1)], 21:la[2:]})
    o+=weave(pk_a,{2:read_list()[:1],4:read_list()[1:]})
    o+=pr+["s_nop 0"]
    o+=acc+fl1
    for s in filt(o): a(s)
    a.c("rotate tile ring; continue while next tile < NT")
    a(f"s_cmp_lt_u32 s{sT1}, s{sNT}")
    a(f"s_mov_b32 s{sT1}, s{sT2}")
    a(f"s_mov_b32 s{sT2}, s{sT3}")

def pack_a(a):
    a("s_mov_b32 s81, 0xbfb8aa3b")
    for r in range(16):
        a(f"v_accvgpr_read_b32 v{64+r}, a{AU+r}")
    for r in range(16):
        a(f"v_mul_f32 v{64+r}, s81, v{64+r}")
    for r in range(16):
        a(f"v_cvt_pk_bf16_f32 v{32+r}, v{64+r}, v{64+r}")
    for r in range(16):
        a(f"v_lshlrev_b32 v{32+r}, 16, v{32+r}")
    for r in range(16):
        a(f"v_sub_f32 v{32+r}, v{64+r}, v{32+r}")
    for r in range(16):
        a(f"v_cvt_pk_bf16_f32 v{64+r}, v{64+r}, v{32+r}")

def node_zero(a):
    a("v_mov_b32 v4, 0")
    a(f"s_mul_i32 s80, s{sWAVE}, {NREC}")
    a(f"s_add_u32 m0, s80, {NODE+256}")
    a("s_nop 0")
    for i in range(6):
        for q in range(4):
            a(f"ds_write_addtid_b32 v4 offset:{8*NREC*i+256*q}")
    a(f"s_cmp_gt_u32 s{sWAVE}, 1")
    lab=a.newlabel("K3_NZ")
    a(f"s_cbranch_scc1 {lab}")
    for q in range(4):
        a(f"ds_write_addtid_b32 v4 offset:{8*NREC*6+256*q}")
    a(f"s_mov_b32 m0, {NODE}")
    a("s_nop 0")
    a("ds_write_addtid_b32 v4")
    a.label(lab)

def weights_read(a):
    a("v_and_b32 v9, 63, v0")
    a("v_lshlrev_b32 v9, 4, v9")
    a(f"v_add_u32 v9, {WMAIN}, v9")
    for p in range(18):
        a(f"ds_read_b128 {ar(4*p,4)}, v9 offset:{p*1024}")

def gen_k3(name):
    a=Asm()
    def stamp(nm):
        if STAMP and nm in STAMP:
            i=STAMP.index(nm)
            a(f"s_mem{'real' if nm.startswith('rt') else ''}time s[{88+2*i}:{89+2*i}]")
            a("s_waitcnt lgkmcnt(0)")
    def rec_offsets():
        a.c("first-half record offsets: p=(64i+(t>>3)+b)&255 ; off=b*16384+p*64+(t&7)*8  (second halves: +4 MiB)")
        a("""
        v_lshrrev_b32 v8, 3, v0
        v_and_b32 v9, 7, v0
        v_lshlrev_b32 v9, 3, v9
        s_lshl_b32 s37, s2, 14
        v_add_u32 v9, s37, v9
        v_add_u32 v10, s2, v8
        """)
        for i in range(4):
            a(f"v_add_u32 v11, {64*i}, v10")
            a("v_and_b32 v11, 255, v11")
            a(f"v_lshl_add_u32 v{RECO+i}, v11, 6, v9")
        a(f"s_movk_i32 s37, {CH}")
        a("v_mul_u32_u24 v3, s37, v8")
    def load_low(qs):
        for i in range(4):
            if i in qs: a(f"buffer_load_dwordx2 {vr(16+2*i,2)}, v{RECO+i}, {sr(sREC,4)}, 0 offen")
            else: a(f"v_mov_b32 v{16+2*i}, 0"); a(f"v_mov_b32 v{17+2*i}, 0")
    def load_high():
        for r in range(24,32): a(f"v_mov_b32 v{r}, 0")
        a("s_mov_b32 s80, 0x400000")
        for i in range(4):
            lab=a.newlabel("K3_HI")
            a(f"v_and_b32 v9, 63, v{17+2*i}")
            a("v_cmp_eq_u32 vcc, 62, v9")
            a(f"s_cbranch_vccz {lab}")
            a("s_lshr_b64 s[82:83], vcc, 7")
            a("s_lshl_b64 s[84:85], s[82:83], 8")
            a("s_sub_u32 s82, s84, s82")
            a("s_subb_u32 s83, s85, s83")
            a("s_mov_b64 exec, vcc")
            a(f"v_mov_b32 v{17+2*i}, 0")
            a("s_mov_b64 exec, s[82:83]")
            a(f"buffer_load_dwordx2 {vr(24+2*i,2)}, v{RECO+i}, {sr(sREC,4)}, s80 offen")
            a("s_mov_b64 exec, -1")
            a.label(lab)
    def QI(r):
        return (r>>1)&3
    a.raw(f".globl {name}\n.p2align 8\n.type {name},@function\n{name}:")
    a("s_cmp_ge_u32 s2, 256")
    a("s_cbranch_scc1 K3_END")
    stamp("start"); stamp("rt0")
    a("s_load_dwordx2 s[10:11], s[0:1], 88")
    a("s_load_dwordx4 s[4:7], s[0:1], 0")
    a("s_load_dwordx2 s[8:9], s[0:1], 72")
    a("v_lshrrev_b32 v1, 6, v0")
    a("v_and_b32 v13, 63, v0")
    a(f"v_readfirstlane_b32 s{sWAVE}, v1")
    a(f"s_mul_i32 s{sNODE0}, s2, 49")
    a(f"s_movk_i32 s{s128}, 128")
    a(f"s_mov_b32 s{sMODE}, 0")
    a(f"s_mov_b32 s{sOVF}, 0")
    a(f"s_mov_b32 s{sSTEP}, {64*CH}")
    rec_offsets()
    a.c("DMA chunk constants: lane=(p8,cpos): cA=(cpos^(p8>>1))*16 ; i odd: ^64 ; + 3072-1024*i")
    a("""
    v_lshrrev_b32 v10, 3, v13
    v_and_b32 v11, 7, v13
    v_lshrrev_b32 v12, 1, v10
    v_xor_b32 v11, v11, v12
    v_lshlrev_b32 v11, 4, v11
    """)
    for i in range(4):
        if i%2==1:
            a("v_xor_b32 v12, 64, v11"); a(f"v_add_u32 v{CCH+i}, {3072-1024*i}, v12")
        else:
            a(f"v_add_u32 v{CCH+i}, {3072-1024*i}, v11")
    a.c("x_dst DMA address: (node0+8v+p8)*128 + (cA ^ 64*(v&1)) + 3072")
    a(f"s_and_b32 s37, s{sWAVE}, 1")
    a("s_lshl_b32 s37, s37, 6")
    a("v_xor_b32 v11, s37, v11")
    a(f"s_lshl_b32 s38, s{sWAVE}, 3")
    a(f"s_add_u32 s38, s38, s{sNODE0}")
    a("v_add_u32 v10, s38, v10")
    a("v_lshl_add_u32 v10, v10, 7, v11")
    a(f"v_add_u32 v{EE[0]}, 3072, v10")
    a(f"v_lshlrev_b32 v{EE[0]+1}, 4, v13")
    a("v_lshrrev_b32 v8, 3, v0")
    a(f"v_add_u32 v8, s{sNODE0}, v8")
    a("v_lshlrev_b32 v8, 7, v8")
    a("v_and_b32 v9, 7, v0")
    a("v_lshl_add_u32 v8, v9, 4, v8")
    a(f"v_add_u32 v{EE[0]+2}, 3072, v8")
    a(f"s_lshl_b32 s80, s{sWAVE}, 12")
    a(f"s_add_u32 s{sST0}, s80, {STAGE}")
    a(f"s_add_u32 s{sST1}, s{sST0}, 32768")
    a.c("table (with histogram) zero + tile counter, then barrier A right after the record loads")
    a("v_mov_b32 v4, 0\nv_mov_b32 v5, 0\nv_mov_b32 v6, 0\nv_mov_b32 v7, 0")
    a("v_lshlrev_b32 v8, 4, v0")
    a(f"v_add_u32 v9, {TAB}, v8")
    a(f"v_cmp_gt_u32 vcc, {64*TROW//16}, v0")
    a("s_and_saveexec_b64 s[38:39], vcc")
    a("ds_write_b128 v9, v[4:7]")
    a("s_mov_b64 exec, s[38:39]")
    a(f"v_mov_b32 v9, {TCTR}")
    a("v_mov_b32 v8, 16")
    a("ds_write_b32 v9, v8")
    a("s_waitcnt lgkmcnt(0)")
    stamp("karg")
    a.c("---- SRDs + prologue loads")
    a.srd(sREC, 10, 11, WS_COMPACT)
    load_low((0,1,2,3))
    a("s_barrier")
    a(f"s_sub_u32 s{sXB}, s4, 3072")
    a(f"s_subb_u32 s{sXB+1}, s5, 0")
    a(f"s_and_b32 s{sXB+1}, s{sXB+1}, 0xffff")
    a(f"s_mov_b32 s{sXB+2}, {N*128+3072}")
    a(f"s_mov_b32 s{sXB+3}, 0x20000")
    a.srd(sWS, 10, 11, WS_W+34*1024)
    a.srd(sEA, 6, 7, E*32)
    a.srd(sOUT, 8, 9, N*128)
    stamp("issued")
    a("v_mov_b32 v4, 0")
    a(f"v_mov_b32 v8, {OVF}")
    a("ds_write_b32 v8, v4")
    a.c("---- per-lane constants for main loop")
    a("""
    v_and_b32 v8, 31, v13
    v_lshrrev_b32 v9, 5, v13
    v_bfe_u32 v10, v13, 1, 3
    v_lshlrev_b32 v11, 2, v9
    v_xor_b32 v10, v10, v11
    v_lshlrev_b32 v11, 7, v8
    """)
    a(f"v_add_u32 v11, s{sST0}, v11")
    for j in range(4):
        a(f"v_xor_b32 v12, {j}, v10")
        a(f"v_lshl_add_u32 v{XRD+j}, v12, 4, v11")
    a(f"v_lshlrev_b32 v{KH16}, 4, v9")
    a(f"v_lshlrev_b32 v{LOF4}, 2, v8")
    a(f"v_add_u32 v{LOFF}, {NODE}, v{LOF4}")
    a.c("ext-step operands: A side = group indicator / pad flag, B side = A entry / BIG")
    a("v_bfe_u32 v10, v8, 2, 1")
    a("v_cmp_eq_u32 vcc, v10, v9")
    a("v_mov_b32 v11, 0x3f803f80")
    a("v_mov_b32 v12, 0")
    a(f"v_cndmask_b32 v{AX[0]}, v12, v11, vcc")
    a(f"v_mov_b32 v{AX[1]}, v{AX[0]}")
    a("v_cmp_eq_u32 vcc, 0, v9")
    a("v_mov_b32 v11, 0x3f80")
    for q in (0,1):
        a(f"v_mov_b32 v{AX[q]+1}, 0"); a(f"v_mov_b32 v{AX[q]+2}, 0"); a(f"v_mov_b32 v{AX[q]+3}, 0")
        a(f"v_mov_b32 v{BX[q]+1}, 0x7149"); a(f"v_mov_b32 v{BX[q]+2}, 0"); a(f"v_mov_b32 v{BX[q]+3}, 0")
    a(f"v_cndmask_b32 v{KM}, v12, v11, vcc")
    a(f"v_mov_b32 v{CONE}, 1.0")
    a(f"v_mov_b32 v{CONE+1}, 1.0")
    def prefill(full):
        a("v_mov_b32 v4, -1")
        a(f"s_lshl_b32 s80, s{sWAVE}, 8")
        a(f"s_add_u32 m0, s80, {LIST_S}")
        a("s_nop 0")
        nl=NTILE*192//256
        for i in range((nl+1+7)//8):
            if (i+1)*8<=nl: a(f"ds_write_addtid_b32 v4 offset:{2048*i}")
            else:
                lab=a.newlabel("K3_PF")
                a(f"s_cmp_gt_u32 s{sWAVE}, {nl-8*i}")
                a(f"s_cbranch_scc1 {lab}")
                a(f"s_cmp_eq_u32 s{sWAVE}, {nl-8*i}")
                a("s_cselect_b32 exec_hi, 0, -1")
                a(f"ds_write_addtid_b32 v4 offset:{2048*i}")
                a("s_mov_b32 exec_hi, -1")
                a.label(lab)
        a("v_lshlrev_b32 v8, 4, v0")
        a("v_mov_b32 v4, 0\nv_mov_b32 v5, 0\nv_mov_b32 v6, 0\nv_mov_b32 v7, 0")
        a(f"v_cmp_gt_u32 vcc, {DESCN}, v0")
        a("s_and_saveexec_b64 s[38:39], vcc")
        a(f"ds_write_b128 v8, v[4:7] offset:{DESC}")
        a("s_mov_b64 exec, s[38:39]")
        if full:
            a(f"v_add_u32 v9, {TAB}, v8")
            a(f"v_cmp_gt_u32 vcc, {64*TROW//16}, v0")
            a("s_and_saveexec_b64 s[38:39], vcc")
            a("ds_write_b128 v9, v[4:7]")
            a("s_mov_b64 exec, s[38:39]")
            a(f"v_mov_b32 v9, {TCTR}")
            a("v_mov_b32 v10, 16")
            a("ds_write_b32 v9, v10")
            a("s_waitcnt lgkmcnt(0)")
            a("s_barrier")
    a.c("==== first pass: prefill lists / desc (needed only after barrier B), node records zero")
    prefill(False)
    node_zero(a)
    stamp("prefill")
    a.label("K3_HIST")
    a.c("==== histogram / rank")
    a("s_waitcnt vmcnt(0)")
    stamp("rec")
    a("v_mov_b32 v8, 1")
    a(f"v_mov_b32 v10, {TROW}")
    a(f"v_mov_b32 v11, {TAB}")
    a("v_mov_b32 v96, 0")
    a("s_mov_b32 s8, 0")
    a(f"s_cmp_eq_u32 s{sMODE}, 3")
    a("s_cbranch_scc1 K3_NOHIGH")
    load_high()
    a.label("K3_NOHIGH")
    def hist_regs(rs):
        for r in rs:
            a(f"v_and_b32 v9, 63, v{16+r}")
            a(f"v_mad_u32_u24 v{32+r}, v9, v10, v11")
            a(f"v_cmp_ne_u32 s[{sM+2*r}:{sM+2*r+1}], 0, v9")
        for r in rs:
            a(f"s_mov_b64 exec, s[{sM+2*r}:{sM+2*r+1}]")
            a(f"ds_add_rtn_u32 v{48+r}, v{32+r}, v8 offset:40")
        a("s_mov_b64 exec, -1")
    hist_regs(range(8))
    a.c("eid of the first halves while the second halves arrive")
    for i in range(1,4):
        a(f"s_mul_i32 s80, s{sSTEP}, {i}")
        a(f"v_add_u32 v{80+i}, s80, v3")
    a("v_mov_b32 v80, v3")
    for r in range(8):
        a(f"v_bfe_u32 v{64+r}, v{16+r}, 6, 12")
        a(f"v_add_u32 v{64+r}, v{64+r}, v{80+QI(r)}")
    a.c("first pass: x_dst rows / weights -> LDS, epilogue x rows")
    a(f"s_cmp_lg_u32 s{sMODE}, 0")
    a("s_cbranch_scc1 K3_NODMA")
    a(f"s_lshl_b32 s80, s{sWAVE}, 10")
    a(f"s_add_u32 m0, s80, {XD}")
    a("s_nop 0")
    a(f"buffer_load_dwordx4 v{EE[0]}, {sr(sXB,4)}, 0 offen lds")
    for r in range(5):
        skip=a.newlabel("K3_WSK")
        a(f"s_add_u32 s80, s{sWAVE}, {8*r}")
        if r==4:
            a("s_cmp_ge_u32 s80, 34")
            a(f"s_cbranch_scc1 {skip}")
        a("s_cmp_ge_u32 s80, 18")
        a(f"s_cselect_b32 s82, {(WAU-18*1024)-WMAIN & 0xffffffff}, 0")
        a("s_lshl_b32 s80, s80, 10")
        a("s_add_u32 s82, s82, s80")
        a(f"s_add_u32 m0, s82, {WMAIN}")
        a(f"s_add_u32 s80, s80, {WS_W}")
        a(f"buffer_load_dwordx4 v{EE[0]+1}, {sr(sWS,4)}, s80 offen lds")
        if r==4: a.label(skip)
    a(f"buffer_load_dwordx4 {vr(XEPI,4)}, v{EE[0]+2}, {sr(sXB,4)}, 0 offen")
    a.label("K3_NODMA")
    a(f"s_cmp_lg_u32 s{sMODE}, 0")
    a("s_cbranch_scc1 K3_WH0")
    a("s_waitcnt vmcnt(6)")
    a("s_branch K3_WH1")
    a.label("K3_WH0")
    a("s_waitcnt vmcnt(0)")
    a.label("K3_WH1")
    a.c("an overflow marker can only sit in the last slot of a second half")
    a("s_mov_b64 s[6:7], 0")
    for r in (9,11,13,15):
        a(f"v_and_b32 v9, 63, v{16+r}")
        a("v_cmp_eq_u32 vcc, 63, v9")
        a("s_or_b64 s[6:7], s[6:7], vcc")
    a("s_cmp_lg_u64 s[6:7], 0")
    a("s_cbranch_scc1 K3_INLINE")
    a.label("K3_INLINEDONE")
    hist_regs(range(8,16))
    a("v_and_b32 v9, 63, v96")
    a("v_mad_u32_u24 v97, v9, v10, v11")
    a("v_cmp_ne_u32 s[6:7], 0, v9")
    a("s_mov_b64 exec, s[6:7]")
    a("ds_add_rtn_u32 v98, v97, v8 offset:40")
    a("s_mov_b64 exec, -1")
    a.c("eid of the second halves while the atomics are in flight")
    for r in range(8,16):
        a(f"v_bfe_u32 v{64+r}, v{16+r}, 6, 12")
        a(f"v_add_u32 v{64+r}, v{64+r}, v{80+QI(r)}")
    a("v_bfe_u32 v99, v96, 6, 12")
    a("v_add_u32 v99, s8, v99")
    a("s_waitcnt lgkmcnt(0)")
    a("s_barrier")
    stamp("hist")
    a.c("==== scan: wave v handles level j=v ; lane = d1")
    a(f"v_mad_u32_u24 v9, v13, v10, v11")
    a("ds_read_b32 v128, v9 offset:40")
    NPF=0
    if 'nopf' not in X_:
        a(f"s_cmp_lg_u32 s{sMODE}, 0")
        a("s_cbranch_scc1 K3_NOPF")
        a.c("warm-up while the sort runs: one slice of x into this XCD's L2, first rows of e_attr into the Infinity Cache (results unused)")
        a("v_lshlrev_b32 v12, 7, v0")
        a("s_lshr_b32 s80, s2, 3")
        a("s_mul_i32 s80, s80, 50048")
        a("s_add_u32 s80, s80, 3072")
        a("v_cmp_gt_u32 vcc, 0x187, v0")
        a("v_bfrev_b32 v156, 1")
        a("s_nop 0")
        a("v_cndmask_b32 v156, v156, v12, vcc")
        a(f"buffer_load_dword v156, v156, {sr(sXB,4)}, s80 offen")
        NPF=1
        EPF=int(os.environ.get('EPF','0'))
        if EPF:
            a(f"s_mul_i32 s80, s2, {EPF*128}")
            a(f"v_cmp_gt_u32 vcc, {EPF}, v0")
            a("v_bfrev_b32 v158, 1")
            a("s_nop 0")
            a("v_cndmask_b32 v158, v158, v12, vcc")
            a(f"buffer_load_dword v158, v158, {sr(sEA,4)}, s80 offen")
            NPF=2
    if 'nopf' not in X_: a.label("K3_NOPF")
    a("s_waitcnt lgkmcnt(0)")
    a(f"v_mul_u32_u24 v130, {NREC}, v13")
    a("v_readlane_b32 s87, v128, 63")
    a("v_cmp_gt_u32 vcc, 50, v13")
    a("s_nop 1")
    a("v_cndmask_b32 v128, 0, v128, vcc")
    a("v_add_u32 v129, 15, v128")
    a("v_lshrrev_b32 v129, 4, v129")
    MS=[4,6,8,10,82,84]
    a(f"s_mov_b32 s81, 0"); a("s_mov_b32 s86, 0")
    for j in range(8):
        a(f"v_cmp_lt_u32 s[4:5], {j}, v129")
        a("s_bcnt1_i32_b64 s80, s[4:5]")
        a(f"s_cmp_gt_u32 s{sWAVE}, {j}")
        a("s_cselect_b32 s36, s80, 0")
        a("s_add_u32 s81, s81, s80")
        a("s_add_u32 s86, s86, s36")
    a(f"v_cmp_lt_u32 s[4:5], s{sWAVE}, v129")
    a("v_cmp_lt_u32 vcc, 8, v129")
    a("s_mov_b32 s36, 0")
    a("s_cbranch_vccnz K3_TAIL")
    a.label("K3_TAILDONE")
    a(f"s_cmp_gt_u32 s81, {MAXG}")
    a("s_cbranch_scc1 K3_SPLIT")
    a("s_cmp_lg_u32 s87, 0")
    a("s_cbranch_scc1 K3_MARKERS")
    a.label("K3_MARKDONE")
    a("v_mbcnt_lo_u32_b32 v131, s4, 0")
    a("v_mbcnt_hi_u32_b32 v131, s5, v131")
    a(f"s_lshl_b32 s80, s{sWAVE}, 4")
    a("v_subrev_u32 v132, s80, v128")
    a("v_add_u32 v131, s86, v131")
    a("v_min_u32 v132, 16, v132")
    a("v_lshlrev_b32 v133, 2, v131")
    a("v_lshl_add_u32 v132, v132, 22, v130")
    a(f"v_subrev_u32 v131, s{sWAVE}, v131")
    a("v_lshlrev_b32 v131, 6, v131")
    a(f"s_lshl_b32 s80, s{sWAVE}, 2")
    a("v_add_u32 v9, s80, v9")
    a("ds_write_b32 v9, v131")
    a("s_mov_b64 exec, s[4:5]")
    a(f"ds_write_b32 v133, v132 offset:{DESC}")
    a("s_mov_b64 exec, -1")
    a("s_cmp_lg_u32 s36, 0")
    a("s_cbranch_scc1 K3_TAILDESC")
    a.label("K3_TAILDESCDONE")
    a("s_add_u32 s81, s81, 1")
    a(f"s_lshr_b32 s{sNT}, s81, 1")
    a.c("scatter part 1 (independent of the table)")
    a("s_cmp_lg_u32 s36, 0")
    a("s_cbranch_scc1 K3_CLAMP")
    for r in range(16):
        a(f"v_lshrrev_b32 v9, 2, v{48+r}")
        a(f"v_lshrrev_b32 v{16+r}, 18, v{16+r}")
        a("v_and_b32 v9, -4, v9")
        a(f"v_add_u32 v{32+r}, v9, v{32+r}")
    a.label("K3_CLAMPDONE")
    a("v_lshrrev_b32 v9, 4, v98")
    a("v_min_u32 v9, 8, v9")
    a("v_lshl_add_u32 v97, v9, 2, v97")
    a("v_lshrrev_b32 v96, 18, v96")
    a(f"s_waitcnt vmcnt({NPF}) lgkmcnt(0)")
    a("s_barrier")
    stamp("scan")
    a.c("==== scatter")
    a("ds_read_b32 v97, v97")
    for r in range(16):
        a(f"ds_read_b32 v{32+r}, v{32+r}")
    a.c("list lane parts")
    a("v_lshrrev_b32 v8, 3, v13")
    a(f"v_lshlrev_b32 v{LS}, 3, v8")
    a("""
    v_and_b32 v8, 7, v13
    v_bfe_u32 v9, v13, 3, 2
    v_lshl_add_u32 v8, v8, 2, v9
    """)
    a(f"v_lshlrev_b32 v{LE}, 2, v8")
    a("v_lshrrev_b32 v8, 5, v13")
    a(f"v_lshlrev_b32 v{LD}, 2, v8")
    for r in range(16):
        if r==0: a("s_waitcnt lgkmcnt(8)")
        if r==8: a("s_waitcnt lgkmcnt(8)") if False else a("s_waitcnt lgkmcnt(0)")
        a(f"v_lshl_add_u32 v{32+r}, v{48+r}, 2, v{32+r}")
        a(f"v_lshrrev_b32 v{48+r}, 1, v{32+r}")
    a("v_lshl_add_u32 v97, v98, 2, v97")
    a("v_lshrrev_b32 v98, 1, v97")
    for r in range(16):
        a(f"s_mov_b64 exec, s[{sM+2*r}:{sM+2*r+1}]")
        a(f"ds_write_b32 v{32+r}, v{64+r} offset:{LIST_E}")
        a(f"ds_write_b16 v{48+r}, v{16+r} offset:{LIST_S}")
    a("s_mov_b64 exec, s[6:7]")
    a(f"ds_write_b32 v97, v99 offset:{LIST_E}")
    a(f"ds_write_b16 v98, v96 offset:{LIST_S}")
    a("s_mov_b64 exec, -1")
    a(f"s_cmp_lg_u32 s{sMODE}, 0")
    a("s_cbranch_scc1 K3_NOOPR")
    a.c("node GEMM operands: A -> X regs (x_dst rows), B -> MK regs")
    a(f"s_bfe_u32 s38, s{sWAVE}, 0x10001")
    a("s_lshl_b32 s80, s38, 12")
    a(f"s_add_u32 s80, s80, {XD}")
    a(f"s_sub_u32 s80, s80, s{sST0}")
    for j in range(4):
        a(f"v_add_u32 v12, s80, v{XRD+j}")
        a(f"ds_read_b128 {vr(X+4*j,4)}, v12")
    a(f"s_and_b32 s37, s{sWAVE}, 1")
    a(f"s_lshr_b32 s39, s{sWAVE}, 2")
    a("s_lshl_b32 s80, s37, 13")
    a("s_lshl_b32 s81, s39, 10")
    a("s_add_u32 s80, s80, s81")
    a(f"s_add_u32 s80, s80, {WAU}")
    a("v_lshlrev_b32 v12, 4, v13")
    a("v_add_u32 v12, s80, v12")
    for j in range(4):
        a(f"ds_read_b128 {vr(MK+4*j,4)}, v12 offset:{j*2048}")
    a.label("K3_NOOPR")
    a(f"v_mov_b32 v{VONE}, 1")
    a(f"s_mov_b32 s{sT1}, s{sWAVE}")
    a(f"s_add_u32 s{sT2}, s{sWAVE}, 8")
    for s in list_addr(sT1): a(s)
    a("s_waitcnt lgkmcnt(0)")
    a("s_barrier")
    stamp("main")
    a.c("==== pipeline prologue: tile T0 = wave, T1 = wave+8, then dynamic")
    for s in read_list(): a(s)
    for s in desc_addr(sT1): a(s)
    a(f"ds_read_b32 v{VD}, v{AD} offset:{DESC}")
    for s in fetch_tile(): a(s)
    a("s_waitcnt lgkmcnt(2)")
    for s in issue_loads(0): a(s)
    for s in list_addr(sT2): a(s)
    for s in read_list(): a(s)
    a(f"s_cmp_lg_u32 s{sMODE}, 0")
    a("s_cbranch_scc1 K3_NOW")
    a.c("node GEMM -> a[72:87]; main weights -> a[0:71]")
    for j in range(4):
        c = "0" if j==0 else ar(AU,16)
        a(f"v_mfma_f32_32x32x16_bf16 {ar(AU,16)}, {vr(X+4*j,4)}, {vr(MK+4*j,4)}, {c}")
    weights_read(a)
    a(f"s_and_b32 s37, s{sWAVE}, 1")
    a("s_cmp_eq_u32 s37, 1")
    a("s_cbranch_scc1 K3_NOW")
    a.c("A waves: Aneg = -log2e * D -> node records")
    a(f"s_bfe_u32 s38, s{sWAVE}, 0x10001")
    a(f"s_lshr_b32 s39, s{sWAVE}, 2")
    a(f"s_mul_i32 s80, s38, {32*NREC}")
    a("s_lshl_b32 s81, s39, 7")
    a("s_add_u32 s80, s80, s81")
    a(f"s_add_u32 s80, s80, {NREC}")
    a("v_bfe_u32 v9, v0, 5, 1")
    a(f"v_mul_u32_u24 v9, {4*NREC}, v9")
    a(f"v_add_u32 v10, v9, v{LOFF}")
    a("v_add_u32 v10, s80, v10")
    a("s_nop 7")
    pack_a(a)
    lab=a.newlabel("K3_NW"); end=a.newlabel("K3_NWE")
    for r in range(8):
        a(f"ds_write_b32 v10, v{64+r} offset:{((r&3)+8*(r>>2))*NREC}")
    a("s_cmp_eq_u32 s38, 1")
    a(f"s_cbranch_scc1 {lab}")
    for r in range(8,16):
        a(f"ds_write_b32 v10, v{64+r} offset:{((r&3)+8*(r>>2))*NREC}")
    a(f"s_branch {end}")
    a.label(lab)
    a("s_mov_b32 exec_hi, 0")
    a(f"ds_write_b32 v10, v72 offset:{16*NREC}")
    a("s_mov_b32 exec_hi, -1")
    a.label(end)
    a.label("K3_NOW")
    a("s_waitcnt lgkmcnt(0)")
    a("s_barrier")
    stamp("wread")
    for s in issue_loads(1): a(s)
    a(f"v_readfirstlane_b32 s{sT3}, v{VCT}")
    for s in list_addr(sT3): a(s)
    for s in read_list(): a(s)
    a(f"s_cmp_ge_u32 s{sT1}, s{sNT}")
    a("s_cbranch_scc1 K3_BATCHEND")
    a.c("ring: current = T1(old) ; next = T2 ; next2 = T3")
    a(f"s_mov_b32 s{sT1}, s{sT2}")
    a(f"s_mov_b32 s{sT2}, s{sT3}")
    a("s_waitcnt vmcnt(5)")
    for s in node_addr(0): a(s)
    for s in read_x(0): a(s)
    a(read_a(0)); a(read_a(1))
    a("s_waitcnt lgkmcnt(0)")
    for s in chain(0,0): a(s)
    a("s_nop 7"); a("s_nop 7")
    if 'prio47' in X_ or 'prio03' in X_:
        a(f"s_cmp_ge_u32 s{sWAVE}, 4")
        a("s_cbranch_scc0 K3_NOPRIO" if 'prio47' in X_ else "s_cbranch_scc1 K3_NOPRIO")
        a("s_setprio 1")
        a.label("K3_NOPRIO")
    stamp("pipe")
    al=os.environ.get('ALIGN')
    if al:
        p,off=al.split(':')
        a(f".p2align {p}")
        for _ in range(int(off)//4): a("s_nop 0")
    else: a(".p2align 3")
    a.label("K3_LOOP")
    tile_body(a,0)
    a("s_cbranch_scc0 K3_BATCHEND")
    tile_body(a,1)
    a("s_cbranch_scc1 K3_LOOP")
    a.label("K3_BATCHEND")
    a("s_waitcnt vmcnt(0) lgkmcnt(0)")
    stamp("loopend")
    a.c("U waves park their U tile in their own stage area")
    a(f"s_and_b32 s37, s{sWAVE}, 1")
    a("s_cmp_eq_u32 s37, 0")
    a("s_cbranch_scc1 K3_NOU")
    a("v_bfe_u32 v9, v0, 5, 1")
    a("v_lshlrev_b32 v9, 9, v9")
    a(f"v_add_u32 v9, v9, v{LOF4}")
    a(f"v_add_u32 v9, s{sST0}, v9")
    for r in range(16):
        a(f"ds_write_b32 v9, a{AU+r} offset:{((r&3)+8*(r>>2))*128}")
    a.label("K3_NOU")
    a("v_cmp_gt_u32 vcc, 0x188, v0")
    a("v_lshrrev_b32 v16, 3, v0")
    a("v_and_b32 v17, 7, v0")
    a(f"v_mul_u32_u24 v10, {NREC}, v16")
    a("v_lshl_add_u32 v10, v17, 6, v10")
    a(f"v_add_u32 v10, {NODE+NREC}, v10")
    a("v_lshrrev_b32 v11, 5, v16")
    a("v_lshrrev_b32 v12, 2, v17")
    a("v_lshlrev_b32 v11, 13, v11")
    a("v_lshl_add_u32 v11, v12, 14, v11")
    a("v_and_b32 v12, 31, v16")
    a("v_lshl_add_u32 v11, v12, 7, v11")
    a("v_and_b32 v12, 3, v17")
    a("v_lshl_add_u32 v11, v12, 5, v11")
    a(f"v_add_u32 v11, {STAGE+4096}, v11")
    a("s_waitcnt lgkmcnt(0)")
    a("s_barrier")
    a.c("==== next batch?  mode 1: second half next ; overflow segments if any marker was seen")
    a(f"s_cmp_eq_u32 s{sMODE}, 1")
    a("s_cbranch_scc1 K3_HALF2")
    a(f"s_cmp_eq_u32 s{sOVF}, 0")
    a("s_cbranch_scc1 K3_EPI")
    a(f"v_mov_b32 v8, {OVF}")
    a("ds_read_b32 v9, v8")
    a("s_waitcnt lgkmcnt(0)")
    a("v_readfirstlane_b32 s80, v9")
    a("s_nop 3")
    a("s_cmp_eq_u32 s80, 0")
    a("s_cbranch_scc1 K3_EPI")
    a("s_lshl_b32 s81, s80, 2")
    a(f"s_add_u32 s81, s81, {OVF+12}")
    a("v_mov_b32 v8, s81")
    a("ds_read_b32 v9, v8")
    a("s_waitcnt lgkmcnt(0)")
    a("v_readfirstlane_b32 s82, v9")
    a("s_barrier")
    a("s_sub_u32 s80, s80, 1")
    a(f"v_mov_b32 v8, {OVF}")
    a("v_mov_b32 v9, s80")
    a("ds_write_b32 v8, v9")
    a("s_lshr_b32 s83, s82, 24")
    a("s_bfe_u32 s84, s82, 0xc000c")
    a("s_and_b32 s85, s82, 0xfff")
    a(f"s_mul_i32 s86, s83, {CH*4}")
    a(f"s_add_u32 s86, s86, {WS_COMPACT}")
    a("s_lshl_b32 s84, s84, 2")
    a("s_add_u32 s86, s86, s84")
    a("s_lshl_b32 s85, s85, 2")
    a(f"s_add_u32 s{sREC+2}, s86, s85")
    a(f"s_mul_i32 s83, s83, {CH}")
    a("v_mov_b32 v3, s83")
    a(f"s_mov_b32 s{sSTEP}, 0")
    a(f"s_mov_b32 s{sMODE}, 3")
    a("v_lshlrev_b32 v8, 4, v0")
    a("v_add_u32 v8, s86, v8")
    for i in range(4):
        a(f"buffer_load_dwordx4 {vr(16+4*i,4)}, v8, {sr(sREC,4)}, 0 offen")
        if i<3: a("v_add_u32 v8, 8192, v8")
    a("v_and_b32 v13, 63, v0")
    a("s_waitcnt vmcnt(0)")
    a("s_branch K3_BATCH")
    a.label("K3_INLINE")
    a(f"s_cmp_eq_u32 s{sMODE}, 3")
    a("s_cbranch_scc1 K3_INLINEDONE")
    for q,r in enumerate((9,11,13,15)):
        nxt=a.newlabel("K3_IN")
        a(f"v_and_b32 v9, 63, v{16+r}")
        a("v_cmp_eq_u32 vcc, 63, v9")
        a(f"s_cbranch_vccz {nxt}")
        a("s_ff1_i32_b64 s80, vcc")
        a("s_nop 3")
        a(f"v_readlane_b32 s81, v{16+r}, s80")
        a("s_lshr_b32 s82, s81, 18")
        a("s_cmp_gt_u32 s82, 64")
        a(f"s_cbranch_scc1 {nxt}")
        a("s_lshr_b32 s83, s80, 3")
        a(f"s_lshl_b32 s84, s{sWAVE}, 3")
        a("s_add_u32 s83, s83, s84")
        a(f"s_add_u32 s83, s83, {64*q}")
        a(f"s_mul_i32 s8, s83, {CH}")
        a("s_bfe_u32 s84, s81, 0xc0006")
        a("s_add_u32 s84, s84, s8")
        a("s_lshl_b32 s84, s84, 2")
        a(f"s_add_u32 s84, s84, {WS_COMPACT}")
        a("s_lshl_b32 s82, s82, 2")
        a(f"s_add_u32 s{sREC+2}, s84, s82")
        a("v_lshlrev_b32 v9, 2, v13")
        a("v_add_u32 v9, s84, v9")
        a(f"buffer_load_dword v96, v9, {sr(sREC,4)}, 0 offen")
        a("s_mov_b32 m0, s80")
        a("v_mov_b32 v9, 0")
        a("s_nop 0")
        a(f"v_writelane_b32 v{16+r}, 0, m0")
        a("s_waitcnt vmcnt(0)")
        a(f"s_mov_b32 s{sREC+2}, {WS_COMPACT}")
        a("s_branch K3_INLINEDONE")
        a.label(nxt)
    a("s_branch K3_INLINEDONE")
    a.label("K3_CLAMP")
    for r in range(16):
        a(f"v_lshrrev_b32 v9, 4, v{48+r}")
        a("v_min_u32 v9, 8, v9")
        a(f"v_lshl_add_u32 v{32+r}, v9, 2, v{32+r}")
        a(f"v_lshrrev_b32 v{16+r}, 18, v{16+r}")
    a("s_branch K3_CLAMPDONE")
    a.label("K3_BATCH")
    prefill(True)
    a("s_branch K3_HIST")
    a.label("K3_SPLIT")
    a("s_waitcnt vmcnt(0) lgkmcnt(0)")
    a("s_barrier")
    a.c("node GEMM operands: A -> X regs (x_dst rows), B -> MK regs")
    a(f"s_bfe_u32 s38, s{sWAVE}, 0x10001")
    a("s_lshl_b32 s80, s38, 12")
    a(f"s_add_u32 s80, s80, {XD}")
    a(f"s_sub_u32 s80, s80, s{sST0}")
    for j in range(4):
        a(f"v_add_u32 v12, s80, v{XRD+j}")
        a(f"ds_read_b128 {vr(X+4*j,4)}, v12")
    a(f"s_and_b32 s37, s{sWAVE}, 1")
    a(f"s_lshr_b32 s39, s{sWAVE}, 2")
    a("s_lshl_b32 s80, s37, 13")
    a("s_lshl_b32 s81, s39, 10")
    a("s_add_u32 s80, s80, s81")
    a(f"s_add_u32 s80, s80, {WAU}")
    a("v_lshlrev_b32 v12, 4, v13")
    a("v_add_u32 v12, s80, v12")
    for j in range(4):
        a(f"ds_read_b128 {vr(MK+4*j,4)}, v12 offset:{j*2048}")
    a("s_waitcnt lgkmcnt(0)")
    a.c("first pass also has to finish the one-time work (node GEMM, weights) that the restart skips")
    for j in range(4):
        c = "0" if j==0 else ar(AU,16)
        a(f"v_mfma_f32_32x32x16_bf16 {ar(AU,16)}, {vr(X+4*j,4)}, {vr(MK+4*j,4)}, {c}")
    weights_read(a)
    a(f"s_and_b32 s37, s{sWAVE}, 1")
    a("s_cmp_eq_u32 s37, 1")
    a("s_cbranch_scc1 K3_SPLIT2")
    a(f"s_bfe_u32 s38, s{sWAVE}, 0x10001")
    a(f"s_lshr_b32 s39, s{sWAVE}, 2")
    a(f"s_mul_i32 s80, s38, {32*NREC}")
    a("s_lshl_b32 s81, s39, 7")
    a("s_add_u32 s80, s80, s81")
    a(f"s_add_u32 s80, s80, {NREC}")
    a("v_bfe_u32 v9, v0, 5, 1")
    a(f"v_mul_u32_u24 v9, {4*NREC}, v9")
    a(f"v_add_u32 v10, v9, v{LOFF}")
    a("v_add_u32 v10, s80, v10")
    a("s_nop 7")
    pack_a(a)
    lab=a.newlabel("K3_NW"); end=a.newlabel("K3_NWE")
    for r in range(8):
        a(f"ds_write_b32 v10, v{64+r} offset:{((r&3)+8*(r>>2))*NREC}")
    a("s_cmp_eq_u32 s38, 1")
    a(f"s_cbranch_scc1 {lab}")
    for r in range(8,16):
        a(f"ds_write_b32 v10, v{64+r} offset:{((r&3)+8*(r>>2))*NREC}")
    a(f"s_branch {end}")
    a.label(lab)
    a("s_mov_b32 exec_hi, 0")
    a(f"ds_write_b32 v10, v72 offset:{16*NREC}")
    a("s_mov_b32 exec_hi, -1")
    a.label(end)
    a.label("K3_SPLIT2")
    a("s_waitcnt lgkmcnt(0)")
    a("s_barrier")
    a(f"s_mov_b32 s{sMODE}, 1")
    load_low((0,1))
    a("s_waitcnt vmcnt(0)")
    a("s_branch K3_BATCH")
    a.label("K3_HALF2")
    a(f"s_mov_b32 s{sMODE}, 2")
    rec_offsets()
    load_low((2,3))
    a("v_and_b32 v13, 63, v0")
    a("s_waitcnt vmcnt(0) lgkmcnt(0)")
    a("s_branch K3_BATCH")
    a.label("K3_MARKERS")
    a(f"s_mov_b32 s{sOVF}, 1")
    a("v_lshrrev_b32 v8, 3, v0")
    a("v_mov_b32 v10, 1")
    a(f"v_mov_b32 v11, {OVF}")
    a(f"s_mov_b32 s80, {TAB+63*TROW}")
    for r in range(16):
        lab=a.newlabel("K3_MK")
        a(f"v_cmp_eq_u32 vcc, s80, v{32+r}")
        a(f"s_and_b64 vcc, vcc, s[{sM+2*r}:{sM+2*r+1}]")
        a(f"s_cbranch_vccz {lab}")
        a(f"s_andn2_b64 s[{sM+2*r}:{sM+2*r+1}], s[{sM+2*r}:{sM+2*r+1}], vcc")
        a("s_mov_b64 exec, vcc")
        a("ds_add_rtn_u32 v134, v11, v10")
        a(f"v_add_u32 v12, {64*QI(r)}, v8")
        a("v_lshlrev_b32 v12, 24, v12")
        a(f"v_bfe_u32 v135, v{16+r}, 6, 12")
        a("v_lshl_add_u32 v12, v135, 12, v12")
        a(f"v_lshrrev_b32 v135, 18, v{16+r}")
        a("v_add_u32 v12, v135, v12")
        a("s_waitcnt lgkmcnt(0)")
        a("v_lshlrev_b32 v134, 2, v134")
        a(f"ds_write_b32 v134, v12 offset:{OVF+16}")
        a("s_mov_b64 exec, -1")
        a.label(lab)
    a("s_branch K3_MARKDONE")
    a.label("K3_TAIL")
    a("v_subrev_u32 v134, 8, v129")
    a("v_max_i32 v134, 0, v134")
    a("v_mov_b32 v135, v134")
    for sh in (1,2,4,8):
        a("s_nop 1")
        a(f"v_add_u32_dpp v135, v135, v135 row_shr:{sh} row_mask:0xf bank_mask:0xf bound_ctrl:0")
    a("s_nop 1")
    a("v_add_u32_dpp v135, v135, v135 row_bcast:15 row_mask:0xa bank_mask:0xf")
    a("s_nop 1")
    a("v_add_u32_dpp v135, v135, v135 row_bcast:31 row_mask:0xc bank_mask:0xf")
    a("s_nop 1")
    a("v_readlane_b32 s80, v135, 63")
    a("v_sub_u32 v135, v135, v134")
    a("v_add_u32 v135, s81, v135")
    a("v_subrev_u32 v149, 8, v135")
    a("v_lshlrev_b32 v149, 6, v149")
    a("ds_write_b32 v9, v149 offset:32")
    a("s_add_u32 s81, s81, s80")
    a("s_mov_b32 s36, 1")
    a("s_branch K3_TAILDONE")
    a.label("K3_TAILDESC")
    a("s_mov_b32 s36, 8")
    a.label("K3_TLOOP")
    a("v_cmp_lt_u32 vcc, s36, v129")
    a("s_cbranch_vccz K3_TAILDESCDONE")
    a("s_lshl_b32 s80, s36, 4")
    a("v_subrev_u32 v132, s80, v128")
    a("v_min_u32 v132, 16, v132")
    a("v_lshl_add_u32 v132, v132, 22, v130")
    a("s_sub_u32 s80, s36, 8")
    a("v_add_u32 v133, s80, v135")
    a("v_lshlrev_b32 v133, 2, v133")
    a("s_mov_b64 exec, vcc")
    a(f"ds_write_b32 v133, v132 offset:{DESC}")
    a("s_mov_b64 exec, -1")
    a("s_add_u32 s36, s36, 1")
    a("s_branch K3_TLOOP")
    a.label("K3_EPI")
    a("s_and_saveexec_b64 s[38:39], vcc")
    a("s_cbranch_execz K3_END")
    a("ds_read_b128 v[24:27], v11")
    a("ds_read_b128 v[28:31], v11 offset:16")
    for q in range(4):
        a(f"ds_read_b128 {vr(48+4*q,4)}, v10 offset:{256+16*q}")
        a(f"ds_read_b128 {vr(64+4*q,4)}, v10 offset:{768+16*q}")
    a(f"v_add_u32 v8, s{sNODE0}, v16")
    a("v_lshlrev_b32 v8, 7, v8")
    a("v_lshl_add_u32 v8, v17, 4, v8")
    a("s_mov_b32 s80, 0x358637bd")
    a("s_waitcnt lgkmcnt(0)")
    for i in range(8): a(f"v_cvt_f32_f64 v{32+i}, {vr(48+2*i,2)}")
    for i in range(8): a(f"v_cvt_f32_f64 v{40+i}, {vr(64+2*i,2)}")
    for i in range(8): a(f"v_add_f32 v{32+i}, s80, v{32+i}")
    for i in range(8): a(f"v_rcp_f32 v{32+i}, v{32+i}")
    a("s_nop 0")
    for i in range(8): a(f"v_fma_f32 v{24+i}, v{40+i}, v{32+i}, v{24+i}")
    for i in range(8): a(f"v_max_f32 v{24+i}, 0, v{24+i}")
    for i in range(4):
        a(f"v_lshlrev_b32 v40, 16, v{XEPI+i}")
        a(f"v_and_b32 v41, 0xffff0000, v{XEPI+i}")
        a(f"v_add_f32 v{24+2*i}, v40, v{24+2*i}")
        a(f"v_add_f32 v{25+2*i}, v41, v{25+2*i}")
    for i in range(4):
        a(f"v_cvt_pk_bf16_f32 v{44+i}, v{24+2*i}, v{25+2*i}")
    a(f"buffer_store_dwordx4 v[44:47], v8, {sr(sOUT,4)}, 0 offen")
    if STAMP:
        a("s_waitcnt vmcnt(0)")
        stamp("end"); stamp("rt1")
        a("v_and_b32 v9, 63, v0")
        a("v_cmp_eq_u32 vcc, 0, v9")
        a("s_and_b64 exec, exec, vcc")
        a("s_cbranch_execz K3_END")
        a(f"s_mov_b32 s{sREC+2}, {WS_STAMP+256*8*64}")
        a(f"s_lshl_b32 s80, s2, 3")
        a(f"s_add_u32 s80, s80, s{sWAVE}")
        a(f"s_lshl_b32 s80, s80, 6")
        a(f"s_add_u32 s80, s80, {WS_STAMP}")
        a("v_mov_b32 v8, s80")
        for i in range(len(STAMP)):
            a(f"v_mov_b32 v16, s{88+2*i}")
            a(f"v_mov_b32 v17, s{89+2*i}")
            a(f"buffer_store_dwordx2 v[16:17], v8, {sr(sREC,4)}, 0 offen offset:{8*i}")
            a("s_nop 1")
        if os.environ.get('DBGOUT'):
            a.c("dev only: stamps of workgroup 100 wave 0 into d_debug")
            a("s_cmp_eq_u32 s2, 100")
            a("s_cbranch_scc0 K3_END")
            a(f"s_cmp_eq_u32 s{sWAVE}, 0")
            a("s_cbranch_scc0 K3_END")
            a("s_load_dwordx2 s[4:5], s[0:1], 80")
            a("s_waitcnt lgkmcnt(0)")
            a("s_mov_b32 s8, s4\ns_and_b32 s9, s5, 0xffff\ns_mov_b32 s10, 256\ns_mov_b32 s11, 0x20000")
            a("v_mov_b32 v8, 0")
            for i in range(len(STAMP)):
                if STAMP[i].startswith('rt'): a(f"v_mov_b32 v16, s{88+2*i}")
                else:
                    a(f"s_sub_u32 s80, s{88+2*i}, s88"); a("v_mov_b32 v16, s80")
                a(f"buffer_store_dword v16, v8, s[8:11], 0 offen offset:{4*i}")
                a("s_nop 1")
    a.label("K3_END")
    a("s_endpgm")
    return a.text(), kdesc(name, 256, 102, 168)
```

```python
from asmlib import *
N=12500; E=800000; CH=3125; BN=49
WS_SLOTS=0; WS_COMPACT=0x800000; WS_W=0xC00000
K1_LINES=0; K1_CNT=32768; K1_FLAG=32768+1024; K1_START=32768+2048; K1_LDS=32768+4096

import os
STAMP1=os.environ['STAMP1'].split(',') if os.environ.get('STAMP1') else False
WS_STAMP1=0xE00000
def gen_k1(name="bucket_kernel"):
    a=Asm()
    def stamp(nm):
        if STAMP1 and nm in STAMP1:
            i=STAMP1.index(nm)
            a(f"s_mem{'real' if nm.startswith('rt') else ''}time s[{48+2*i}:{49+2*i}]")
            a("s_waitcnt lgkmcnt(0)")
    a.raw(f".globl {name}\n.p2align 8\n.type {name},@function\n{name}:")
    a("s_cmp_gt_u32 s2, 255")
    a("s_cbranch_scc1 K1_END")
    stamp("start"); stamp("rt0")
    a("s_load_dwordx4 s[4:7], s[0:1], 16")
    a("s_load_dwordx2 s[8:9], s[0:1], 88")
    a.c("zero LDS lines + counters")
    a("""
    v_lshlrev_b32 v1, 4, v0
    v_mov_b32 v4, 0
    v_mov_b32 v5, 0
    v_mov_b32 v6, 0
    v_mov_b32 v7, 0
    v_lshlrev_b32 v2, 2, v0
    ds_write_b128 v1, v[4:7]
    ds_write_b128 v1, v[4:7] offset:16384
    """)
    a(f"ds_write_b32 v2, v4 offset:{K1_CNT}")
    a(f"s_mul_i32 s10, s2, {CH*4}")
    a(f"s_sub_u32 s11, {E*4}, s10")
    a(f"s_min_u32 s11, s11, {CH*4}")
    a("s_waitcnt lgkmcnt(0)")
    stamp("karg")
    a.c("SRDs: dst s[12:15], src s[16:19], ws s[20:23]")
    a("""
    s_add_u32 s12, s6, s10
    s_addc_u32 s13, s7, 0
    s_and_b32 s13, s13, 0xffff
    s_mov_b32 s14, s11
    s_mov_b32 s15, 0x20000
    s_add_u32 s16, s4, s10
    s_addc_u32 s17, s5, 0
    s_and_b32 s17, s17, 0xffff
    s_mov_b32 s18, s11
    s_mov_b32 s19, 0x20000
    buffer_load_dwordx4 v[8:11], v1, s[12:15], 0 offen
    buffer_load_dwordx4 v[12:15], v1, s[16:19], 0 offen
    """)
    a.srd(20, 8, 9, WS_COMPACT + 256*CH*4)
    PF=int(os.environ.get('PF','0'))
    a("s_barrier")
    a.c("waves 13..15 hold no edges; wave 13 of workgroups 0..33 re-lays weight fragment #workgroup meanwhile")
    a("v_lshrrev_b32 v60, 6, v0")
    a("s_nop 0")
    a("v_readfirstlane_b32 s43, v60")
    a("s_nop 3")
    a("s_cmp_eq_u32 s43, 13")
    a("s_cselect_b32 s44, s2, 64")
    a("s_cmp_lt_u32 s44, 34")
    a("s_cbranch_scc1 K1_WEIGHTS")
    if PF:
        a.c("waves 13..15 hold no edges: they touch the first PF*256 lines of e_attr (streaming, results unused)")
        a("v_lshrrev_b32 v60, 6, v0")
        a("s_nop 0")
        a("v_readfirstlane_b32 s43, v60")
        a("s_nop 3")
        a("s_cmp_lt_u32 s43, 13")
        a("s_cbranch_scc1 K1_NOPF")
        a("s_load_dwordx2 s[40:41], s[0:1], 8")
        a(f"s_mul_i32 s42, s2, {PF*128}")
        a("v_subrev_u32 v60, 832, v0")
        a("v_lshlrev_b32 v61, 7, v60")
        a("s_waitcnt lgkmcnt(0)")
        a("s_mov_b32 s44, s40")
        a("s_and_b32 s45, s41, 0xffff")
        a(f"s_mov_b32 s46, {E*32}")
        a("s_mov_b32 s47, 0x20000")
        for r in range((PF+191)//192):
            n=min(PF-192*r,192)
            if n<192:
                a(f"v_cmp_gt_u32 vcc, {n}, v60")
                a("s_and_b64 exec, exec, vcc")
            a(f"buffer_load_dword v{32+r}, v61, s[44:47], s42 offen")
            a("s_add_u32 s42, s42, 24576")
        a("s_mov_b64 exec, -1")
        for k in range(4): a(f"s_mov_b64 s[{24+2*k}:{25+2*k}], 0")
        a("s_branch K1_NOFLAG")
        a.label("K1_NOPF")
    a.c("eloc_k = 4*tid+k ; valid masks s[24+2k:25+2k]")
    a("v_lshlrev_b32 v3, 2, v0")
    for k in range(4):
        a(f"v_add_u32 v{16+k}, {k}, v3")
    for k in range(4):
        a(f"v_cmp_gt_u32 s[{24+2*k}:{25+2*k}], s14, v{16+k}") if False else None
    a("s_lshr_b32 s11, s11, 2")
    for k in range(4):
        a(f"v_cmp_gt_u32 s[{24+2*k}:{25+2*k}], s11, v{16+k}")
    a("v_mov_b32 v40, 1")
    a("s_movk_i32 s10, 21400")
    stamp("bar1")
    a("s_waitcnt vmcnt(1)")
    stamp("dst")
    for k in range(4):
        a(f"v_mul_u32_u24 v{20+k}, s10, v{8+k}")
    for k in range(4):
        a(f"v_lshrrev_b32 v{20+k}, 20, v{20+k}")
    for k in range(4):
        a(f"v_mul_u32_u24 v{24+k}, 49, v{20+k}")
        a(f"v_lshlrev_b32 v{28+k}, 2, v{20+k}")
    for k in range(4):
        a(f"s_mov_b64 exec, s[{24+2*k}:{25+2*k}]")
        a(f"ds_add_rtn_u32 v{32+k}, v{28+k}, v40 offset:{K1_CNT}")
    a("s_mov_b64 exec, -1")
    for k in range(4):
        a(f"v_sub_u32 v{24+k}, v{8+k}, v{24+k}")
        a(f"v_lshl_add_u32 v{16+k}, v{16+k}, 6, v{24+k}")
    a("s_waitcnt vmcnt(0)")
    for k in range(4):
        a(f"v_lshl_add_u32 v{16+k}, v{12+k}, 18, v{16+k}")
        a(f"v_add_u32 v{16+k}, 1, v{16+k}")
        a(f"v_lshlrev_b32 v{24+k}, 7, v{20+k}")
    a("s_waitcnt lgkmcnt(0)")
    a.c("slot = rank + (rank >= 15): slot 15 is reserved for the 'second half present' marker")
    for k in range(4):
        a(f"v_cmp_lt_u32 vcc, 14, v{32+k}")
        a("s_nop 1")
        a(f"v_addc_co_u32 v36, vcc, 0, v{32+k}, vcc")
        a(f"v_lshl_add_u32 v{24+k}, v36, 2, v{24+k}")
    a("s_mov_b64 s[34:35], 0")
    for k in range(4):
        a(f"v_cmp_gt_u32 vcc, 31, v{32+k}")
        a(f"s_and_b64 exec, vcc, s[{24+2*k}:{25+2*k}]")
        a(f"ds_write_b32 v{24+k}, v{16+k}")
        a(f"s_andn2_b64 s[36:37], s[{24+2*k}:{25+2*k}], vcc")
        a("s_or_b64 s[34:35], s[34:35], s[36:37]")
        a("s_mov_b64 exec, -1")
    a.c("any overflow in this wave -> set flag")
    a("s_cmp_eq_u64 s[34:35], 0")
    a("s_cbranch_scc1 K1_NOFLAG")
    a(f"v_mov_b32 v41, {K1_FLAG}")
    a("ds_write_b32 v41, v40")
    a.label("K1_NOFLAG")
    a("s_waitcnt lgkmcnt(0)")
    stamp("scat")
    a("s_barrier")
    stamp("bar2")
    a(f"v_mov_b32 v41, {K1_FLAG}")
    a("ds_read_b32 v42, v41")
    a.c("thread t copies piece t&3 of the first and of the second half of line b = t>>2")
    a("""
    v_lshrrev_b32 v52, 2, v0
    v_and_b32 v53, 3, v0
    v_lshlrev_b32 v56, 7, v52
    v_lshl_add_u32 v56, v53, 4, v56
    v_lshlrev_b32 v57, 2, v52
    """)
    a("ds_read_b128 v[44:47], v56")
    a("ds_read_b128 v[48:51], v56 offset:64")
    a(f"ds_read_b32 v43, v57 offset:{K1_CNT}")
    a("""
    v_add_u32 v54, s2, v52
    v_and_b32 v54, 255, v54
    v_lshlrev_b32 v54, 6, v54
    v_lshl_add_u32 v54, v53, 4, v54
    v_lshl_add_u32 v54, v52, 14, v54
    v_add_u32 v55, 0x400000, v54
    v_cmp_eq_u32 s[40:41], 3, v53
    """)
    a("s_waitcnt lgkmcnt(3)")
    a("v_readfirstlane_b32 s10, v42")
    a("s_nop 3")
    a("s_cmp_lg_u32 s10, 0")
    a("s_cbranch_scc1 K1_SLOW")
    a.label("K1_COPY")
    a("s_waitcnt lgkmcnt(0)")
    fl=os.environ.get('K1ST','sc1')
    a("v_cmp_lt_u32 vcc, 15, v43")
    a("s_and_b64 s[42:43], vcc, s[40:41]")
    a("v_mov_b32 v58, 62")
    a("s_nop 0")
    a("v_cndmask_b32 v47, v47, v58, s[42:43]")
    a(f"buffer_store_dwordx4 v[44:47], v54, s[20:23], 0 offen {fl}")
    a("s_and_saveexec_b64 s[42:43], vcc")
    a("s_cbranch_execz K1_NOHI")
    a(f"buffer_store_dwordx4 v[48:51], v55, s[20:23], 0 offen {fl}")
    a.label("K1_NOHI")
    a("s_mov_b64 exec, s[42:43]")
    if STAMP1:
        a("s_waitcnt vmcnt(0)")
        stamp("end"); stamp("rt1")
        a("v_and_b32 v9, 63, v0")
        a("v_cmp_eq_u32 vcc, 0, v9")
        a("s_and_b64 exec, exec, vcc")
        a(f"s_mov_b32 s22, {WS_STAMP1+256*16*64}")
        a("v_lshrrev_b32 v8, 6, v0")
        a("v_lshlrev_b32 v8, 6, v8")
        a("s_lshl_b32 s10, s2, 10")
        a(f"s_add_u32 s10, s10, {WS_STAMP1}")
        a("v_add_u32 v8, s10, v8")
        for i in range(len(STAMP1)):
            a(f"v_mov_b32 v16, s{48+2*i}")
            a(f"v_mov_b32 v17, s{49+2*i}")
            a(f"buffer_store_dwordx2 v[16:17], v8, s[20:23], 0 offen offset:{8*i}")
            a("s_nop 1")
        if os.environ.get('DBGOUT'):
            a("s_mov_b64 exec, 1")
            a("s_cmp_eq_u32 s2, 100")
            a("s_cbranch_scc0 K1_END")
            a("v_lshrrev_b32 v8, 6, v0")
            a("s_nop 0")
            a("v_readfirstlane_b32 s10, v8")
            a("s_nop 3")
            a("s_cmp_eq_u32 s10, 0")
            a("s_cbranch_scc0 K1_END")
            a("s_load_dwordx2 s[4:5], s[0:1], 80")
            a("s_waitcnt lgkmcnt(0)")
            a("s_mov_b32 s8, s4\ns_and_b32 s9, s5, 0xffff\ns_mov_b32 s10, 256\ns_mov_b32 s11, 0x20000")
            a("v_mov_b32 v8, 0")
            for i in range(len(STAMP1)):
                if STAMP1[i].startswith('rt'): a(f"v_mov_b32 v16, s{48+2*i}")
                else:
                    a(f"s_sub_u32 s12, s{48+2*i}, s48"); a("v_mov_b32 v16, s12")
                a(f"buffer_store_dword v16, v8, s[8:11], 0 offen offset:{32+4*i}")
                a("s_nop 1")
    a("s_endpgm")
    a.label("K1_SLOW")
    a.c("lines with more than 31 records keep 30 of them; slot 31 becomes a marker pointing at the rest in the compact list")
    a("s_waitcnt lgkmcnt(0)")
    a("v_cmp_gt_u32 vcc, 0x100, v0")
    a("s_and_saveexec_b64 s[38:39], vcc")
    a("s_cbranch_execz K1_S1")
    a(f"ds_read_b32 v57, v2 offset:{K1_CNT}")
    a("s_waitcnt lgkmcnt(0)")
    a("v_cmp_lt_u32 vcc, 31, v57")
    a("s_and_b64 exec, exec, vcc")
    a("s_cbranch_execz K1_S1")
    a("v_subrev_u32 v57, 30, v57")
    a(f"v_mov_b32 v58, {K1_FLAG+4}")
    a("ds_add_rtn_u32 v56, v58, v57")
    a("v_lshlrev_b32 v58, 7, v0")
    a("s_waitcnt lgkmcnt(0)")
    a(f"ds_write_b32 v2, v56 offset:{K1_START}")
    a("v_lshlrev_b32 v59, 6, v56")
    a("v_lshl_add_u32 v59, v57, 18, v59")
    a("v_or_b32 v59, 63, v59")
    a("ds_write_b32 v58, v59 offset:124")
    a.label("K1_S1")
    a("s_mov_b64 exec, -1")
    a("s_waitcnt lgkmcnt(0)")
    a("s_barrier")
    a(f"s_mul_i32 s10, s2, {CH*4}")
    a(f"s_add_u32 s10, s10, {WS_COMPACT}")
    for k in range(4):
        lab=a.newlabel("K1_SK")
        a(f"v_cmp_lt_u32 vcc, 29, v{32+k}")
        a(f"s_and_b64 exec, vcc, s[{24+2*k}:{25+2*k}]")
        a(f"s_cbranch_execz {lab}")
        a(f"ds_read_b32 v57, v{28+k} offset:{K1_CNT}")
        a(f"ds_read_b32 v58, v{28+k} offset:{K1_START}")
        a("s_waitcnt lgkmcnt(0)")
        a("v_cmp_lt_u32 vcc, 31, v57")
        a("s_and_b64 exec, exec, vcc")
        a(f"s_cbranch_execz {lab}")
        a(f"v_add_u32 v58, v58, v{32+k}")
        a("v_subrev_u32 v58, 30, v58")
        a("v_lshlrev_b32 v58, 2, v58")
        a(f"buffer_store_dword v{16+k}, v58, s[20:23], s10 offen")
        a.label(lab)
        a("s_mov_b64 exec, -1")
    a("v_lshrrev_b32 v52, 2, v0")
    a("v_and_b32 v53, 3, v0")
    a("v_lshlrev_b32 v56, 7, v52")
    a("v_lshl_add_u32 v56, v53, 4, v56")
    a("ds_read_b128 v[48:51], v56 offset:64")
    a("s_branch K1_COPY")
    a.label("K1_WEIGHTS")
    a("s_load_dwordx8 s[12:19], s[0:1], 32")
    a("s_load_dwordx2 s[46:47], s[0:1], 64")
    a("""
    v_and_b32 v2, 63, v0
    v_and_b32 v3, 31, v2
    v_lshrrev_b32 v62, 5, v2
    """)
    a("s_mov_b32 s45, s2")
    a("s_waitcnt lgkmcnt(0)")
    a.srd(40, 8, 9, WS_W + 34*1024)
    done=a.newlabel("K1_WSEL")
    MATS=((0,8,14,32,8192),(8,16,46,32,8192),(16,18,16,8,2048),(18,26,12,32,8192),(26,34,18,32,8192))
    for n_,(lo,hi,base,khm,size) in enumerate(MATS):
        nxt=a.newlabel("K1_WN")
        if n_<4:
            a(f"s_cmp_ge_u32 s45, {hi}")
            a(f"s_cbranch_scc1 {nxt}")
        a(f"s_mov_b32 s24, s{base}")
        a(f"s_and_b32 s25, s{base+1}, 0xffff")
        a(f"s_mov_b32 s26, {size}")
        a(f"s_mov_b32 s27, 0x20000")
        a(f"s_sub_u32 s33, s45, {lo}")
        a(f"s_mov_b32 s34, {khm*128}")
        if n_<4:
            a(f"s_branch {done}")
            a.label(nxt)
    a.label(done)
    a("""
    s_lshr_b32 s35, s33, 1
    s_and_b32 s36, s33, 1
    s_lshl_b32 s35, s35, 10
    s_lshl_b32 s36, s36, 6
    s_add_u32 s35, s35, s36
    v_mul_lo_u32 v5, v62, s34
    v_lshl_add_u32 v5, v3, 1, v5
    """)
    a("s_waitcnt vmcnt(0)")
    for i in range(8):
        a(f"buffer_load_ushort v{8+i}, v5, s[24:27], s35 offen offset:{128*i}")
    a("s_lshl_b32 s37, s45, 10")
    a(f"s_add_u32 s37, s37, {WS_W}")
    a("v_lshlrev_b32 v6, 4, v2")
    a("s_waitcnt vmcnt(0)")
    a.c("pieces 0..7 (Wb) and 16,17 (Wc) are pre-scaled by -log2(e)")
    sc=a.newlabel("K1_WSC"); dn=a.newlabel("K1_WDN")
    a("s_cmp_lt_u32 s45, 8")
    a(f"s_cbranch_scc1 {sc}")
    a("s_sub_u32 s38, s45, 16")
    a("s_cmp_lt_u32 s38, 2")
    a(f"s_cbranch_scc1 {sc}")
    for i in range(4):
        a(f"v_lshl_or_b32 v{16+i}, v{9+2*i}, 16, v{8+2*i}")
    a(f"s_branch {dn}")
    a.label(sc)
    a("s_mov_b32 s38, 0xbfb8aa3b")
    for i in range(8):
        a(f"v_lshlrev_b32 v{8+i}, 16, v{8+i}")
        a(f"v_mul_f32 v{8+i}, s38, v{8+i}")
    for i in range(4):
        a(f"v_cvt_pk_bf16_f32 v{16+i}, v{8+2*i}, v{9+2*i}")
    a.label(dn)
    a("buffer_store_dwordx4 v[16:19], v6, s[40:43], s37 offen sc1")
    a.c("back to the common path: no edges in this wave")
    for k in range(4): a(f"s_mov_b64 s[{24+2*k}:{25+2*k}], 0")
    a("v_lshlrev_b32 v2, 2, v0")
    a("v_mov_b32 v4, 0\nv_mov_b32 v5, 0\nv_mov_b32 v6, 0\nv_mov_b32 v7, 0")
    a("s_branch K1_NOFLAG")
    a.label("K1_END")
    a("s_endpgm")
    return a.text(), kdesc(name, 64, 64, 64)
```

```python
from asmlib import *
from k1 import WS_SLOTS, WS_COMPACT, WS_W, CH
import os
N=12500; E=800000
NREC=1280
NTILE=154
OVF=0; TCTR=4; DESC2=2080; DESC=2144; LIST_S=3392; LIST_E=LIST_S+NTILE*64; NODE=LIST_E+NTILE*128
STAGE=(NODE+50*NREC+127)//128*128; K3_LDS=STAGE+65536
TROW=44
TAB=STAGE; XD=STAGE+4096; WAU=STAGE+12288; WMAIN=STAGE+32768
DESCN=(LIST_S-DESC2)//16
LISTN=NTILE*192//16
assert DESC+(NTILE+1)*8<=LIST_S and K3_LDS<=163840, K3_LDS
assert LIST_E<65536
MAXG=2*NTILE-1
G=[16,48]; H=[32,64]; XX=[80,96]; AX=[112,116]; BX=[120,124]; EE=[128,132]
X=80; MK=96
XRD=136; CCH=140; KH16=144; LOFF=145; AS=146; AE=147; AD=148; VM=149
SRC4=150; EID=152; VD=153; NODEA=154; KM=155; NODEB=[157,159]; XEPI=160; RECO=164
CL2E=2; CONE=14; DEN=4; NUM=6; LOF4=1
LS=164; LE=165; LD=166; VCT=167
VONE=13
WB=0; WV=32; WC=64; AU=72
sXB=12; sEA=16; sWS=20; sOUT=24; sWAVE=28; sNODE0=29; sSTEP=30; sNT=31; sMODE=32; sST0=33; sST1=34; s128=35
sMIX=20; sREC=40; sM=48; sT1=44; sT2=45; sT3=46; sOVF=47
STAMP=False
X_=set(os.environ.get('EXP','').split(','))
WS_STAMP=0xD00000

def mfma(d, a_, b_, c, bv=False):
    cs = "0" if c is None else vr(c,16)
    return f"v_mfma_f32_32x32x16_bf16 {vr(d,16)}, {vr(a_,4)}, {vr(b_,4) if bv else ar(b_,4)}, {cs}"

def valu_block(blk):
    g=G[blk]; h=H[blk]
    ex=[f"v_exp_f32 v{g+i}, v{g+i}" for i in range(16)]
    pk_a=[f"v_pk_add_f32 {vr(g+2*i,2)}, {vr(g+2*i,2)}, {vr(CONE,2)}" for i in range(8)]
    rc=[f"v_rcp_f32 v{g+i}, v{g+i}" for i in range(16)]
    acc=[f"v_pk_add_f32 {vr(DEN,2)}, {vr(g,2)}, {vr(g+2,2)}",
         f"v_pk_mul_f32 {vr(NUM,2)}, {vr(g,2)}, {vr(h,2)}",
         f"v_pk_fma_f32 {vr(NUM,2)}, {vr(g+2,2)}, {vr(h+2,2)}, {vr(NUM,2)}"]
    for i in range(2,8):
        acc.append(f"v_pk_add_f32 {vr(DEN,2)}, {vr(g+2*i,2)}, {vr(DEN,2)}")
        acc.append(f"v_pk_fma_f32 {vr(NUM,2)}, {vr(g+2*i,2)}, {vr(h+2*i,2)}, {vr(NUM,2)}")
    return ex,pk_a,rc,acc

def chain(blk, b):
    g=G[blk]; h=H[blk]; x=XX[b]
    o=[mfma(g, AX[b], BX[blk], None, bv=True), mfma(g, EE[b], WC+4*blk, g)]
    o+=[mfma(g, x+4*j, WB+4*(2*j+blk), g) for j in range(4)]
    o+=[mfma(h, x+4*j, WV+4*(2*j+blk), None if j==0 else h) for j in range(4)]
    return o

def addr_calc(b):
    o=[f"v_mad_u32_u16 v8, v{SRC4}, s{s128}, v{CCH}",
       f"v_mad_u32_u16 v9, v{SRC4}, s{s128}, v{CCH+1} op_sel:[1,0,0,0]",
       f"v_mad_u32_u16 v10, v{SRC4+1}, s{s128}, v{CCH+2}",
       f"v_mad_u32_u16 v11, v{SRC4+1}, s{s128}, v{CCH+3} op_sel:[1,0,0,0]",
       f"v_lshl_add_u32 v12, v{EID}, 5, v{KH16}" if 'esame' not in X_ else f"v_mov_b32 v12, v{KH16}"]
    if 'xsame' in X_: o[:4]=[f"v_mov_b32 v{8+i}, v{CCH+i}" for i in range(4)]
    return o
def pad_flag(b):
    return f"v_and_b32_sdwa v{AX[b]+1}, v{EID}, v{KM} dst_sel:DWORD dst_unused:UNUSED_PAD src0_sel:WORD_1 src1_sel:DWORD"
def set_m0(b):
    return f"s_mov_b32 m0, s{sST0 if b==0 else sST1}"
def vmem_x():
    fx=os.environ.get('FX','')
    return [f"buffer_load_dwordx4 v{8+i}, {sr(sXB,4)}, 0 offen offset:{1024*i} {fx} lds".replace("  "," ") for i in range(4)]
def vmem_e(b):
    return f"buffer_load_dwordx4 {vr(EE[b],4)}, v12, {sr(sEA,4)}, 0 offen {os.environ.get('FE','')}"
def issue_loads(b):
    return [set_m0(b)]+addr_calc(b)+[pad_flag(b)]+vmem_x()+[vmem_e(b)]

def list_addr(sT):
    return [f"s_lshl_b32 s80, s{sT}, 6", f"s_lshl_b32 s81, s{sT}, 7",
            f"v_add_u32 v{AS}, s80, v{LS}", f"v_add_u32 v{AE}, s81, v{LE}"]
def desc_addr(sT):
    return [f"s_lshl_b32 s80, s{sT}, 3", f"v_add_u32 v{AD}, s80, v{LD}"]
def read_list():
    return [f"ds_read2_b32 {vr(SRC4,2)}, v{AS} offset0:0 offset1:4",
            f"ds_read_b32 v{EID}, v{AE} offset:{LIST_E}"]
def fetch_tile():
    return ["s_mov_b64 exec, 1", f"ds_add_rtn_u32 v{VCT}, v{LOF4}, v{VONE} offset:{TCTR}", "s_mov_b64 exec, -1"]

def node_addr(bn):
    return [f"v_add_u32_sdwa v{NODEA}, v{VD}, v{LOFF} dst_sel:DWORD dst_unused:UNUSED_PAD src0_sel:WORD_0 src1_sel:DWORD",
            f"v_add_u32 v{NODEB[bn]}, v{NODEA}, v{LOF4}"]
def read_x(bn):
    return [f"ds_read_b128 {vr(XX[bn]+4*j,4)}, v{XRD+j} offset:{32768*bn}" for j in range(4)]
def read_a(blk):
    return f"ds_read_b32 v{BX[blk]}, v{NODEA} offset:{128*blk}"

def flush_to(blk,addr):
    return [f"v_add_f32 v8, v{DEN}, v{DEN+1}", f"v_add_f32 v9, v{NUM}, v{NUM+1}",
            f"v_cvt_f64_f32 v[10:11], v8",
            f"v_cvt_f64_f32 v[8:9], v9",
            f"ds_add_f64 v{addr}, v[10:11] offset:{256+256*blk}",
            f"ds_add_f64 v{addr}, v[8:9] offset:{768+256*blk}"]
def flush(blk,b):
    return flush_to(blk,NODEB[b])

def mix(trans, groups):
    o=[]; ti=0
    for pre,n in groups:
        o+=pre; o+=trans[ti:ti+n]; ti+=n
    assert ti==len(trans), (ti,len(trans))
    return o

def filt(o):
    if 'nomfma' in X_: o=[x for x in o if 'mfma' not in x]
    if 'nolds' in X_: o=[x for x in o if not x.startswith('ds_read')]
    return o

def weave(main, fill):
    o=[]
    for i,x in enumerate(main):
        o+=fill.get(i,[]); o.append(x)
    o+=fill.get(len(main),[])
    return o

def phase(trans, mf, pat):
    o=[]; ti=0
    for k,n in enumerate(pat):
        o.append(mf[k]); o+=trans[ti:ti+n]; ti+=n
    assert ti==len(trans)
    return o
def idx_after(p, nth):
    c=-1
    for i,x in enumerate(p):
        if x.startswith("v_exp") or x.startswith("v_rcp"):
            c+=1
            if c==nth: return i+1
    raise

NODEB2=158
def acc_half(blk, s_):
    g=G[blk]+8*s_; h=H[blk]+8*s_
    o=[f"v_pk_add_f32 {vr(DEN,2)}, {vr(g,2)}, {vr(g+2,2)}",
       f"v_pk_mul_f32 {vr(NUM,2)}, {vr(g,2)}, {vr(h,2)}",
       f"v_pk_fma_f32 {vr(NUM,2)}, {vr(g+2,2)}, {vr(h+2,2)}, {vr(NUM,2)}"]
    for i in (2,3):
        o+=[f"v_pk_add_f32 {vr(DEN,2)}, {vr(g+2*i,2)}, {vr(DEN,2)}",
            f"v_pk_fma_f32 {vr(NUM,2)}, {vr(g+2*i,2)}, {vr(h+2*i,2)}, {vr(NUM,2)}"]
    return o

def tile_body(a, b, first=False):
    bn=b^1
    ex,pk_a,rc,acc=valu_block(0)
    mf=chain(1,b)
    ac=addr_calc(b); vx=vmem_x(); da=desc_addr(sT1); na=node_addr(bn); rx=read_x(bn)
    if 'novm' in X_: vx=["s_nop 0"]*4
    ve=vmem_e(b) if 'novm' not in X_ else "s_nop 0"
    w0=("s_waitcnt vmcnt(0) lgkmcnt(0)" if 'nowait' not in X_ else "s_waitcnt lgkmcnt(0)")
    rfl=f"v_readfirstlane_b32 s{sT3}, v{VCT}"
    fl0=(flush(0,b) if 'noflush' not in X_ else ["s_nop 0","s_nop 0"])
    fl1=(flush(1,b) if 'noflush' not in X_ else ["s_nop 0","s_nop 0"])
    dread=f"ds_read_b32 v{VD}, v{AD} offset:{DESC}"
    a.c(f"---- P0 parity {b}{' (first tile)' if first else ''}")
    a("s_waitcnt lgkmcnt(2)")
    pat=[3,3,3,3,4]
    pe=phase(ex,mf[:5],pat); pr=phase(rc,mf[5:],pat)
    o=weave(pe,{1:[set_m0(b),da[0]]+fetch_tile(), 21:[da[1],ac[0],dread]})
    o+=ac[1:2]+pk_a+pr+[ac[2],ac[3],ac[4],pad_flag(b)]
    if not first:
        o+=weave(acc,{0:[w0]+vx[:1], 1:[rx[0]], 2:vx[1:2], 3:[rx[1]], 4:vx[2:3], 5:[rx[2]], 6:vx[3:4], 7:[rx[3]], 8:[ve]})
        o+=na+[rfl]+[read_a(0)]+fl0
    else:
        o+=[f"v_mov_b32 v{AX[b]}, v{AX[bn]}", f"v_mov_b32 v{AX[b]+2}, 0"]
        o+=weave(acc_half(0,0),{0:[w0]+vx[:1], 1:[rx[0]], 2:vx[1:2], 3:[rx[1]], 4:vx[2:3], 5:[rx[2]], 6:vx[3:4], 7:[rx[3],ve]})
        o+=flush_to(0,NODEB[b])+acc_half(0,1)
        o+=na+[rfl]+[read_a(0)]+flush_to(0,NODEB2)
    for s in filt(o): a(s)
    ex,pk_a,rc,acc=valu_block(1)
    mf=chain(0,bn)
    la=list_addr(sT3)
    a.c(f"---- P1 parity {b}{' (first tile)' if first else ''}")
    pe=phase(ex,mf[:5],pat); pr=phase(rc,mf[5:],pat)
    o=["s_waitcnt lgkmcnt(2)"]+weave(pe,{1:la[:2]+[read_a(1)], 21:la[2:]})
    o+=weave(pk_a,{2:read_list()[:1],4:read_list()[1:]})
    o+=pr+["s_nop 0"]
    if not first: o+=acc+fl1
    else: o+=acc_half(1,0)+flush_to(1,NODEB[b])+acc_half(1,1)+flush_to(1,NODEB2)
    for s in filt(o): a(s)
    a.c("rotate tile ring; continue while next tile < NT")
    a(f"s_cmp_lt_u32 s{sT1}, s{sNT}")
    a(f"s_mov_b32 s{sT1}, s{sT2}")
    a(f"s_mov_b32 s{sT2}, s{sT3}")

def pack_a(a):
    a("s_mov_b32 s81, 0xbfb8aa3b")
    for r in range(16):
        a(f"v_accvgpr_read_b32 v{64+r}, a{AU+r}")
    for r in range(16):
        a(f"v_mul_f32 v{64+r}, s81, v{64+r}")
    for r in range(16):
        a(f"v_cvt_pk_bf16_f32 v{32+r}, v{64+r}, v{64+r}")
    for r in range(16):
        a(f"v_lshlrev_b32 v{32+r}, 16, v{32+r}")
    for r in range(16):
        a(f"v_sub_f32 v{32+r}, v{64+r}, v{32+r}")
    for r in range(16):
        a(f"v_cvt_pk_bf16_f32 v{64+r}, v{64+r}, v{32+r}")

def node_zero(a):
    a("v_mov_b32 v4, 0")
    a(f"s_mul_i32 s80, s{sWAVE}, {NREC}")
    a(f"s_add_u32 m0, s80, {NODE+256}")
    a("s_nop 0")
    for i in range(6):
        for q in range(4):
            a(f"ds_write_addtid_b32 v4 offset:{8*NREC*i+256*q}")
    a(f"s_cmp_gt_u32 s{sWAVE}, 1")
    lab=a.newlabel("K3_NZ")
    a(f"s_cbranch_scc1 {lab}")
    for q in range(4):
        a(f"ds_write_addtid_b32 v4 offset:{8*NREC*6+256*q}")
    a(f"s_mov_b32 m0, {NODE}")
    a("s_nop 0")
    a("ds_write_addtid_b32 v4")
    a.label(lab)

def weights_read(a):
    a("v_and_b32 v9, 63, v0")
    a("v_lshlrev_b32 v9, 4, v9")
    a(f"v_add_u32 v9, {WMAIN}, v9")
    for p in range(18):
        a(f"ds_read_b128 {ar(4*p,4)}, v9 offset:{p*1024}")

def gen_k3(name):
    a=Asm()
    def stamp(nm):
        if STAMP and nm in STAMP:
            i=STAMP.index(nm)
            a(f"s_mem{'real' if nm.startswith('rt') else ''}time s[{88+2*i}:{89+2*i}]")
            a("s_waitcnt lgkmcnt(0)")
    def rec_offsets():
        a.c("first-half record offsets: p=(64i+(t>>3)+b)&255 ; off=b*16384+p*64+(t&7)*8  (second halves: +4 MiB)")
        a("""
        v_lshrrev_b32 v8, 3, v0
        v_and_b32 v9, 7, v0
        v_lshlrev_b32 v9, 3, v9
        s_lshl_b32 s37, s2, 14
        v_add_u32 v9, s37, v9
        v_add_u32 v10, s2, v8
        """)
        for i in range(4):
            a(f"v_add_u32 v11, {64*i}, v10")
            a("v_and_b32 v11, 255, v11")
            a(f"v_lshl_add_u32 v{RECO+i}, v11, 6, v9")
        a(f"s_movk_i32 s37, {CH}")
        a("v_mul_u32_u24 v3, s37, v8")
    def load_low(qs):
        for i in range(4):
            if i in qs: a(f"buffer_load_dwordx2 {vr(16+2*i,2)}, v{RECO+i}, {sr(sREC,4)}, 0 offen")
            else: a(f"v_mov_b32 v{16+2*i}, 0"); a(f"v_mov_b32 v{17+2*i}, 0")
    def load_high():
        for r in range(24,32): a(f"v_mov_b32 v{r}, 0")
        a("s_mov_b32 s80, 0x400000")
        for i in range(4):
            lab=a.newlabel("K3_HI")
            a(f"v_and_b32 v9, 63, v{17+2*i}")
            a("v_cmp_eq_u32 vcc, 62, v9")
            a(f"s_cbranch_vccz {lab}")
            a("s_lshr_b64 s[82:83], vcc, 7")
            a("s_lshl_b64 s[84:85], s[82:83], 8")
            a("s_sub_u32 s82, s84, s82")
            a("s_subb_u32 s83, s85, s83")
            a("s_mov_b64 exec, vcc")
            a(f"v_mov_b32 v{17+2*i}, 0")
            a("s_mov_b64 exec, s[82:83]")
            a(f"buffer_load_dwordx2 {vr(24+2*i,2)}, v{RECO+i}, {sr(sREC,4)}, s80 offen")
            a("s_mov_b64 exec, -1")
            a.label(lab)
    def QI(r):
        return (r>>1)&3
    a.raw(f".globl {name}\n.p2align 8\n.type {name},@function\n{name}:")
    a("s_cmp_ge_u32 s2, 256")
    a("s_cbranch_scc1 K3_END")
    stamp("start"); stamp("rt0")
    a("s_load_dwordx2 s[10:11], s[0:1], 88")
    a("s_load_dwordx4 s[4:7], s[0:1], 0")
    a("s_load_dwordx2 s[8:9], s[0:1], 72")
    a("v_lshrrev_b32 v1, 6, v0")
    a("v_and_b32 v13, 63, v0")
    a(f"v_readfirstlane_b32 s{sWAVE}, v1")
    a(f"s_mul_i32 s{sNODE0}, s2, 49")
    a(f"s_movk_i32 s{s128}, 128")
    a(f"s_mov_b32 s{sMODE}, 0")
    a(f"s_mov_b32 s{sOVF}, 0")
    a(f"s_mov_b32 s{sSTEP}, {64*CH}")
    rec_offsets()
    a.c("DMA chunk constants: lane=(p8,cpos): cA=(cpos^(p8>>1))*16 ; i odd: ^64 ; + 3072-1024*i")
    a("""
    v_lshrrev_b32 v10, 3, v13
    v_and_b32 v11, 7, v13
    v_lshrrev_b32 v12, 1, v10
    v_xor_b32 v11, v11, v12
    v_lshlrev_b32 v11, 4, v11
    """)
    for i in range(4):
        if i%2==1:
            a("v_xor_b32 v12, 64, v11"); a(f"v_add_u32 v{CCH+i}, {3072-1024*i}, v12")
        else:
            a(f"v_add_u32 v{CCH+i}, {3072-1024*i}, v11")
    a.c("x_dst DMA address: (node0+8v+p8)*128 + (cA ^ 64*(v&1)) + 3072")
    a(f"s_and_b32 s37, s{sWAVE}, 1")
    a("s_lshl_b32 s37, s37, 6")
    a("v_xor_b32 v11, s37, v11")
    a(f"s_lshl_b32 s38, s{sWAVE}, 3")
    a(f"s_add_u32 s38, s38, s{sNODE0}")
    a("v_add_u32 v10, s38, v10")
    a("v_lshl_add_u32 v10, v10, 7, v11")
    a(f"v_add_u32 v{EE[0]}, 3072, v10")
    a(f"v_lshlrev_b32 v{EE[0]+1}, 4, v13")
    a("v_lshrrev_b32 v8, 3, v0")
    a(f"v_add_u32 v8, s{sNODE0}, v8")
    a("v_lshlrev_b32 v8, 7, v8")
    a("v_and_b32 v9, 7, v0")
    a("v_lshl_add_u32 v8, v9, 4, v8")
    a(f"v_add_u32 v{EE[0]+2}, 3072, v8")
    a(f"s_lshl_b32 s80, s{sWAVE}, 12")
    a(f"s_add_u32 s{sST0}, s80, {STAGE}")
    a(f"s_add_u32 s{sST1}, s{sST0}, 32768")
    a.c("table (with histogram) zero + tile counter, then barrier A right after the record loads")
    a("v_mov_b32 v4, 0\nv_mov_b32 v5, 0\nv_mov_b32 v6, 0\nv_mov_b32 v7, 0")
    a("v_lshlrev_b32 v8, 4, v0")
    a(f"v_add_u32 v9, {TAB}, v8")
    a(f"v_cmp_gt_u32 vcc, {64*TROW//16}, v0")
    a("s_and_saveexec_b64 s[38:39], vcc")
    a("ds_write_b128 v9, v[4:7]")
    a("s_mov_b64 exec, s[38:39]")
    a(f"v_mov_b32 v9, {TCTR}")
    a("v_mov_b32 v8, 16")
    a("ds_write_b32 v9, v8")
    a("s_waitcnt lgkmcnt(0)")
    stamp("karg")
    a.c("---- SRDs + prologue loads")
    a.srd(sREC, 10, 11, WS_COMPACT)
    load_low((0,1,2,3))
    a("s_barrier")
    a(f"s_sub_u32 s{sXB}, s4, 3072")
    a(f"s_subb_u32 s{sXB+1}, s5, 0")
    a(f"s_and_b32 s{sXB+1}, s{sXB+1}, 0xffff")
    a(f"s_mov_b32 s{sXB+2}, {N*128+3072}")
    a(f"s_mov_b32 s{sXB+3}, 0x20000")
    a.srd(sWS, 10, 11, WS_W+34*1024)
    a.srd(sEA, 6, 7, E*32)
    a.srd(sOUT, 8, 9, N*128)
    stamp("issued")
    a("v_mov_b32 v4, 0")
    a(f"v_mov_b32 v8, {OVF}")
    a("ds_write_b32 v8, v4")
    a.c("---- per-lane constants for main loop")
    a("""
    v_and_b32 v8, 31, v13
    v_lshrrev_b32 v9, 5, v13
    v_bfe_u32 v10, v13, 1, 3
    v_lshlrev_b32 v11, 2, v9
    v_xor_b32 v10, v10, v11
    v_lshlrev_b32 v11, 7, v8
    """)
    a(f"v_add_u32 v11, s{sST0}, v11")
    for j in range(4):
        a(f"v_xor_b32 v12, {j}, v10")
        a(f"v_lshl_add_u32 v{XRD+j}, v12, 4, v11")
    a(f"v_lshlrev_b32 v{KH16}, 4, v9")
    a(f"v_lshlrev_b32 v{LOF4}, 2, v8")
    a(f"v_add_u32 v{LOFF}, {NODE}, v{LOF4}")
    a.c("ext-step operands: A side = group indicator / pad flag, B side = A entry / BIG")
    a("v_bfe_u32 v10, v8, 2, 1")
    a("v_cmp_eq_u32 vcc, v10, v9")
    a("v_mov_b32 v11, 0x3f803f80")
    a("v_mov_b32 v12, 0")
    a(f"v_cndmask_b32 v{AX[0]}, v12, v11, vcc")
    a(f"v_mov_b32 v{AX[1]}, v{AX[0]}")
    a("v_cmp_eq_u32 vcc, 0, v9")
    a("v_mov_b32 v11, 0x3f80")
    for q in (0,1):
        a(f"v_mov_b32 v{AX[q]+1}, 0"); a(f"v_mov_b32 v{AX[q]+2}, 0"); a(f"v_mov_b32 v{AX[q]+3}, 0")
        a(f"v_mov_b32 v{BX[q]+1}, 0x7149"); a(f"v_mov_b32 v{BX[q]+2}, 0"); a(f"v_mov_b32 v{BX[q]+3}, 0")
    a(f"v_cndmask_b32 v{KM}, v12, v11, vcc")
    a(f"v_mov_b32 v{CONE}, 1.0")
    a(f"v_mov_b32 v{CONE+1}, 1.0")
    def prefill(full):
        a("v_mov_b32 v4, -1")
        a(f"s_lshl_b32 s80, s{sWAVE}, 8")
        a(f"s_add_u32 m0, s80, {LIST_S}")
        a("s_nop 0")
        nl=NTILE*192//256
        for i in range((nl+1+7)//8):
            if (i+1)*8<=nl: a(f"ds_write_addtid_b32 v4 offset:{2048*i}")
            else:
                lab=a.newlabel("K3_PF")
                a(f"s_cmp_gt_u32 s{sWAVE}, {nl-8*i}")
                a(f"s_cbranch_scc1 {lab}")
                a(f"s_cmp_eq_u32 s{sWAVE}, {nl-8*i}")
                a("s_cselect_b32 exec_hi, 0, -1")
                a(f"ds_write_addtid_b32 v4 offset:{2048*i}")
                a("s_mov_b32 exec_hi, -1")
                a.label(lab)
        a("v_lshlrev_b32 v8, 4, v0")
        a("v_mov_b32 v4, 0\nv_mov_b32 v5, 0\nv_mov_b32 v6, 0\nv_mov_b32 v7, 0")
        a(f"v_cmp_gt_u32 vcc, {DESCN}, v0")
        a("s_and_saveexec_b64 s[38:39], vcc")
        a(f"ds_write_b128 v8, v[4:7] offset:{DESC2}")
        a("s_mov_b64 exec, s[38:39]")
        if full:
            a(f"v_add_u32 v9, {TAB}, v8")
            a(f"v_cmp_gt_u32 vcc, {64*TROW//16}, v0")
            a("s_and_saveexec_b64 s[38:39], vcc")
            a("ds_write_b128 v9, v[4:7]")
            a("s_mov_b64 exec, s[38:39]")
            a(f"v_mov_b32 v9, {TCTR}")
            a("v_mov_b32 v10, 16")
            a("ds_write_b32 v9, v10")
            a("s_waitcnt lgkmcnt(0)")
            a("s_barrier")
    a.c("==== first pass: prefill lists / desc (needed only after barrier B), node records zero")
    prefill(False)
    node_zero(a)
    stamp("prefill")
    a.label("K3_HIST")
    a.c("==== histogram / rank")
    a("s_waitcnt vmcnt(0)")
    stamp("rec")
    a("v_mov_b32 v8, 1")
    a(f"v_mov_b32 v10, {TROW}")
    a(f"v_mov_b32 v11, {TAB}")
    a("v_mov_b32 v96, 0")
    a("s_mov_b32 s8, 0")
    a(f"s_cmp_eq_u32 s{sMODE}, 3")
    a("s_cbranch_scc1 K3_NOHIGH")
    load_high()
    a.label("K3_NOHIGH")
    def hist_regs(rs):
        for r in rs:
            a(f"v_and_b32 v9, 63, v{16+r}")
            a(f"v_mad_u32_u24 v{32+r}, v9, v10, v11")
            a(f"v_cmp_ne_u32 s[{sM+2*r}:{sM+2*r+1}], 0, v9")
        for r in rs:
            a(f"s_mov_b64 exec, s[{sM+2*r}:{sM+2*r+1}]")
            a(f"ds_add_rtn_u32 v{48+r}, v{32+r}, v8 offset:40")
        a("s_mov_b64 exec, -1")
    hist_regs(range(8))
    a.c("eid of the first halves while the second halves arrive")
    for i in range(1,4):
        a(f"s_mul_i32 s80, s{sSTEP}, {i}")
        a(f"v_add_u32 v{80+i}, s80, v3")
    a("v_mov_b32 v80, v3")
    for r in range(8):
        a(f"v_bfe_u32 v{64+r}, v{16+r}, 6, 12")
        a(f"v_add_u32 v{64+r}, v{64+r}, v{80+QI(r)}")
    a.c("first pass: x_dst rows / weights -> LDS, epilogue x rows")
    a(f"s_cmp_lg_u32 s{sMODE}, 0")
    a("s_cbranch_scc1 K3_NODMA")
    a(f"s_lshl_b32 s80, s{sWAVE}, 10")
    a(f"s_add_u32 m0, s80, {XD}")
    a("s_nop 0")
    a(f"buffer_load_dwordx4 v{EE[0]}, {sr(sXB,4)}, 0 offen lds")
    for r in range(5):
        skip=a.newlabel("K3_WSK")
        a(f"s_add_u32 s80, s{sWAVE}, {8*r}")
        if r==4:
            a("s_cmp_ge_u32 s80, 34")
            a(f"s_cbranch_scc1 {skip}")
        a("s_cmp_ge_u32 s80, 18")
        a(f"s_cselect_b32 s82, {(WAU-18*1024)-WMAIN & 0xffffffff}, 0")
        a("s_lshl_b32 s80, s80, 10")
        a("s_add_u32 s82, s82, s80")
        a(f"s_add_u32 m0, s82, {WMAIN}")
        a(f"s_add_u32 s80, s80, {WS_W}")
        a(f"buffer_load_dwordx4 v{EE[0]+1}, {sr(sWS,4)}, s80 offen lds")
        if r==4: a.label(skip)
    a(f"buffer_load_dwordx4 {vr(XEPI,4)}, v{EE[0]+2}, {sr(sXB,4)}, 0 offen")
    a.label("K3_NODMA")
    a.c("table addresses / sources of the first halves (ranks are back) while the second halves are still on their way")
    a("s_waitcnt lgkmcnt(0)")
    for r in range(8):
        a(f"v_lshrrev_b32 v9, 2, v{48+r}")
        a(f"v_lshrrev_b32 v{16+r}, 18, v{16+r}")
        a("v_and_b32 v9, -4, v9")
        a(f"v_add_u32 v{32+r}, v9, v{32+r}")
    a.c("list lane parts: position of tile row m is q = 16h + 8s + 2(m&3) + ((m>>3)&1), h=(m>>2)&1, s=m>>4")
    a("v_lshrrev_b32 v12, 5, v13")
    a("v_bfe_u32 v9, v13, 3, 2")
    a("v_lshlrev_b32 v9, 2, v9")
    a("v_lshl_add_u32 v12, v12, 5, v9")
    a(f"v_add_u32 v{LS}, {LIST_S}, v12")
    a("""
    v_bfe_u32 v12, v13, 2, 1
    v_bfe_u32 v9, v13, 4, 1
    v_lshlrev_b32 v12, 4, v12
    v_lshl_add_u32 v12, v9, 3, v12
    v_and_b32 v9, 3, v13
    v_lshl_add_u32 v12, v9, 1, v12
    v_bfe_u32 v9, v13, 3, 1
    v_add_u32 v12, v12, v9
    """)
    a(f"v_lshlrev_b32 v{LE}, 2, v12")
    a("v_lshrrev_b32 v12, 5, v13")
    a(f"v_lshlrev_b32 v{LD}, 2, v12")
    a(f"s_cmp_lg_u32 s{sMODE}, 0")
    a("s_cbranch_scc1 K3_WH0")
    a("s_waitcnt vmcnt(6)")
    a("s_branch K3_WH1")
    a.label("K3_WH0")
    a("s_waitcnt vmcnt(0)")
    a.label("K3_WH1")
    a.c("an overflow marker can only sit in the last slot of a second half")
    a("s_mov_b64 s[6:7], 0")
    for r in (9,11,13,15):
        a(f"v_and_b32 v9, 63, v{16+r}")
        a("v_cmp_eq_u32 vcc, 63, v9")
        a("s_or_b64 s[6:7], s[6:7], vcc")
    a("s_cmp_lg_u64 s[6:7], 0")
    a("s_cbranch_scc1 K3_INLINE")
    a.label("K3_INLINEDONE")
    hist_regs(range(8,16))
    a("v_and_b32 v9, 63, v96")
    a("v_mad_u32_u24 v97, v9, v10, v11")
    a("v_cmp_ne_u32 s[6:7], 0, v9")
    a("s_mov_b64 exec, s[6:7]")
    a("ds_add_rtn_u32 v98, v97, v8 offset:40")
    a("s_mov_b64 exec, -1")
    a.c("eid of the second halves while the atomics are in flight")
    for r in range(8,16):
        a(f"v_bfe_u32 v{64+r}, v{16+r}, 6, 12")
        a(f"v_add_u32 v{64+r}, v{64+r}, v{80+QI(r)}")
    a("v_bfe_u32 v99, v96, 6, 12")
    a("v_add_u32 v99, s8, v99")
    a("s_waitcnt lgkmcnt(0)")
    a("s_barrier")
    stamp("hist")
    a.c("==== scan: wave v handles level j=v ; lane = d1")
    a(f"v_mad_u32_u24 v9, v13, v10, v11")
    a("ds_read_b32 v128, v9 offset:40")
    NPF=0
    if 'nopf' not in X_:
        a(f"s_cmp_lg_u32 s{sMODE}, 0")
        a("s_cbranch_scc1 K3_NOPF")
        a.c("warm-up while the sort runs: one slice of x into this XCD's L2, first rows of e_attr into the Infinity Cache (results unused)")
        a("v_lshlrev_b32 v12, 7, v0")
        a("s_lshr_b32 s80, s2, 3")
        a("s_mul_i32 s80, s80, 50048")
        a("s_add_u32 s80, s80, 3072")
        a("v_cmp_gt_u32 vcc, 0x187, v0")
        a("v_bfrev_b32 v156, 1")
        a("s_nop 0")
        a("v_cndmask_b32 v156, v156, v12, vcc")
        a(f"buffer_load_dword v156, v156, {sr(sXB,4)}, s80 offen")
        NPF=1
        EPF=int(os.environ.get('EPF','0'))
        if EPF:
            a(f"s_mul_i32 s80, s2, {EPF*128}")
            a(f"v_cmp_gt_u32 vcc, {EPF}, v0")
            a("v_bfrev_b32 v158, 1")
            a("s_nop 0")
            a("v_cndmask_b32 v158, v158, v12, vcc")
            a(f"buffer_load_dword v158, v158, {sr(sEA,4)}, s80 offen")
            NPF=2
    if 'nopf' not in X_: a.label("K3_NOPF")
    a("s_waitcnt lgkmcnt(0)")
    a(f"v_mul_u32_u24 v130, {NREC}, v13")
    a("v_readlane_b32 s87, v128, 63")
    a("v_cmp_gt_u32 vcc, 50, v13")
    a("s_nop 1")
    a("v_cndmask_b32 v128, 0, v128, vcc")
    a.c("nodes whose last group has 1..8 records share that group with another such node (at most 16 mixed groups)")
    a("v_and_b32 v8, 15, v128")
    a("v_cmp_gt_u32 vcc, 0x80, v128")
    a("v_subrev_u32 v8, 1, v8")
    a("s_mov_b64 s[82:83], vcc")
    a("v_cmp_gt_u32 vcc, 8, v8")
    a("v_add_u32 v129, 15, v128")
    a("v_lshrrev_b32 v10, 4, v128")
    a(f"s_and_b64 s[{sMIX}:{sMIX+1}], vcc, s[82:83]")
    a("v_lshrrev_b32 v129, 4, v129")
    a(f"s_bcnt1_i32_b64 s9, s[{sMIX}:{sMIX+1}]")
    a(f"v_mbcnt_lo_u32_b32 v11, s{sMIX}, 0")
    a(f"v_mbcnt_hi_u32_b32 v11, s{sMIX+1}, v11")
    a("s_cmp_gt_u32 s9, 32")
    a("s_cbranch_scc1 K3_MIXCAP")
    a.label("K3_MIXCAPDONE")
    a(f"v_cndmask_b32 v129, v129, v10, s[{sMIX}:{sMIX+1}]")
    a("s_add_u32 s9, s9, 1")
    a("s_lshr_b32 s9, s9, 1")
    PAIRS=["s[4:5]","s[10:11]","s[44:45]","s[38:39]","s[82:83]","s[84:85]","s[36:37]","vcc"]
    for j in range(8):
        a(f"v_cmp_lt_u32 {PAIRS[j]}, {j}, v129")
    a("s_mov_b32 s81, s9"); a("s_mov_b32 s86, s9")
    for j in range(8):
        a(f"s_bcnt1_i32_b64 s80, {PAIRS[j]}")
        a(f"s_cmp_gt_u32 s{sWAVE}, {j}")
        a("s_cselect_b32 s9, s80, 0")
        a("s_add_u32 s81, s81, s80")
        a("s_add_u32 s86, s86, s9")
    a(f"v_cmp_lt_u32 s[4:5], s{sWAVE}, v129")
    a("v_cmp_lt_u32 vcc, 8, v129")
    a("s_mov_b32 s36, 0")
    a("s_cbranch_vccnz K3_TAIL")
    a.label("K3_TAILDONE")
    a(f"s_cmp_gt_u32 s81, {MAXG}")
    a("s_cbranch_scc1 K3_SPLIT")
    a("s_cmp_lg_u32 s87, 0")
    a("s_cbranch_scc1 K3_MARKERS")
    a.label("K3_MARKDONE")
    a("v_mbcnt_lo_u32_b32 v131, s4, 0")
    a("v_mbcnt_hi_u32_b32 v131, s5, v131")
    a(f"s_lshl_b32 s80, s{sWAVE}, 4")
    a("v_subrev_u32 v132, s80, v128")
    a("v_add_u32 v131, s86, v131")
    a("v_min_u32 v132, 16, v132")
    a("v_lshlrev_b32 v133, 2, v131")
    a("v_lshl_add_u32 v132, v132, 22, v130")
    a("v_cmp_gt_u32 vcc, 16, v131")
    a("s_and_b64 s[82:83], vcc, s[4:5]")
    a(f"v_subrev_u32 v131, s{sWAVE}, v131")
    a("v_lshlrev_b32 v131, 6, v131")
    a.c("shared last group of a node: T = 32k - 64j at level j = full groups")
    a(f"v_cmp_eq_u32 vcc, s{sWAVE}, v10")
    a(f"s_and_b64 s[84:85], vcc, s[{sMIX}:{sMIX+1}]")
    a(f"s_lshl_b32 s80, s{sWAVE}, 6")
    a("v_lshlrev_b32 v12, 5, v11")
    a("v_subrev_u32 v12, s80, v12")
    a("v_cndmask_b32 v131, v131, v12, s[84:85]")
    a(f"s_lshl_b32 s80, s{sWAVE}, 2")
    a("v_add_u32 v9, s80, v9")
    a("ds_write_b32 v9, v131")
    a("s_cmp_lg_u32 s36, 0")
    a("s_cbranch_scc1 K3_TAILDESC")
    a.label("K3_TAILDESCDONE")
    a("s_add_u32 s81, s81, 1")
    a(f"s_lshr_b32 s{sNT}, s81, 1")
    a.c("scatter part 1 (independent of the table)")
    a("s_cmp_lg_u32 s36, 0")
    a("s_cbranch_scc1 K3_CLAMP")
    for r in range(8,16):
        a(f"v_lshrrev_b32 v9, 2, v{48+r}")
        a(f"v_lshrrev_b32 v{16+r}, 18, v{16+r}")
        a("v_and_b32 v9, -4, v9")
        a(f"v_add_u32 v{32+r}, v9, v{32+r}")
    a.label("K3_CLAMPDONE")
    a("v_lshrrev_b32 v9, 4, v98")
    a("v_min_u32 v9, 8, v9")
    a("v_lshl_add_u32 v97, v9, 2, v97")
    a("v_lshrrev_b32 v96, 18, v96")
    a(f"s_waitcnt vmcnt({NPF}) lgkmcnt(0)")
    a("s_barrier")
    stamp("scan")
    a.c("==== scatter")
    a("ds_read_b32 v97, v97")
    for r in range(16):
        a(f"ds_read_b32 v{32+r}, v{32+r}")
    a.c("group descriptors (needed only after the next barrier), written while the table reads are in flight")
    a("s_mov_b64 exec, s[4:5]")
    a(f"ds_write_b32 v133, v132 offset:{DESC}")
    a("s_mov_b64 exec, s[82:83]")
    a(f"ds_write_b32 v133, v132 offset:{DESC2}")
    a.c("descriptors of the mixed groups: node k goes to sub-group k&1 of group k>>1")
    a(f"s_mov_b64 exec, s[{sMIX}:{sMIX+1}]")
    a("v_lshrrev_b32 v12, 1, v11")
    a("v_lshlrev_b32 v12, 2, v12")
    a("v_and_b32 v8, 1, v11")
    a("v_lshlrev_b32 v8, 6, v8")
    a("v_sub_u32 v12, v12, v8")
    a(f"v_add_u32 v12, {DESC}, v12")
    a("ds_write_b32 v12, v130")
    a("s_mov_b64 exec, -1")
    for r in range(16):
        if r==0: a("s_waitcnt lgkmcnt(8)")
        if r==8: a("s_waitcnt lgkmcnt(0)")
        a(f"v_lshl_add_u32 v{32+r}, v{48+r}, 2, v{32+r}")
        a(f"v_lshrrev_b32 v{48+r}, 1, v{32+r}")
    a("v_lshl_add_u32 v97, v98, 2, v97")
    a("v_lshrrev_b32 v98, 1, v97")
    for r in range(16):
        a(f"s_mov_b64 exec, s[{sM+2*r}:{sM+2*r+1}]")
        a(f"ds_write_b32 v{32+r}, v{64+r} offset:{LIST_E}")
        if 'nos' not in X_: a(f"ds_write_b16 v{48+r}, v{16+r} offset:{LIST_S}")
    a("s_mov_b64 exec, s[6:7]")
    a(f"ds_write_b32 v97, v99 offset:{LIST_E}")
    a(f"ds_write_b16 v98, v96 offset:{LIST_S}")
    a("s_mov_b64 exec, -1")
    a(f"s_cmp_lg_u32 s{sMODE}, 0")
    a("s_cbranch_scc1 K3_NOOPR")
    a.c("node GEMM operands: A -> X regs (x_dst rows), B -> MK regs")
    a(f"s_bfe_u32 s38, s{sWAVE}, 0x10001")
    a("s_lshl_b32 s80, s38, 12")
    a(f"s_add_u32 s80, s80, {XD}")
    a(f"s_sub_u32 s80, s80, s{sST0}")
    for j in range(4):
        a(f"v_add_u32 v12, s80, v{XRD+j}")
        a(f"ds_read_b128 {vr(X+4*j,4)}, v12")
    a(f"s_and_b32 s37, s{sWAVE}, 1")
    a(f"s_lshr_b32 s39, s{sWAVE}, 2")
    a("s_lshl_b32 s80, s37, 13")
    a("s_lshl_b32 s81, s39, 10")
    a("s_add_u32 s80, s80, s81")
    a(f"s_add_u32 s80, s80, {WAU}")
    a("v_lshlrev_b32 v12, 4, v13")
    a("v_add_u32 v12, s80, v12")
    for j in range(4):
        a(f"ds_read_b128 {vr(MK+4*j,4)}, v12 offset:{j*2048}")
    a.label("K3_NOOPR")
    a(f"v_mov_b32 v{VONE}, 1")
    a(f"s_mov_b32 s{sT1}, s{sWAVE}")
    a(f"s_add_u32 s{sT2}, s{sWAVE}, 8")
    for s in list_addr(sT1): a(s)
    a("s_waitcnt lgkmcnt(0)")
    a("s_barrier")
    stamp("main")
    a.c("==== pipeline prologue: tile T0 = wave, T1 = wave+8, then dynamic")
    for s in read_list(): a(s)
    for s in desc_addr(sT1): a(s)
    a(f"ds_read_b32 v{VD}, v{AD} offset:{DESC}")
    a(f"ds_read_b32 v{VM}, v{AD} offset:{DESC2}")
    for s in fetch_tile(): a(s)
    a("s_waitcnt lgkmcnt(3)")
    for s in issue_loads(0): a(s)
    for s in list_addr(sT2): a(s)
    for s in read_list(): a(s)
    a(f"s_cmp_lg_u32 s{sMODE}, 0")
    a("s_cbranch_scc1 K3_NOW")
    a.c("node GEMM -> a[72:87]; main weights -> a[0:71]")
    for j in range(4):
        c = "0" if j==0 else ar(AU,16)
        a(f"v_mfma_f32_32x32x16_bf16 {ar(AU,16)}, {vr(X+4*j,4)}, {vr(MK+4*j,4)}, {c}")
    weights_read(a)
    a(f"s_and_b32 s37, s{sWAVE}, 1")
    a("s_cmp_eq_u32 s37, 1")
    a("s_cbranch_scc1 K3_NOW")
    a.c("A waves: Aneg = -log2e * D -> node records")
    a(f"s_bfe_u32 s38, s{sWAVE}, 0x10001")
    a(f"s_lshr_b32 s39, s{sWAVE}, 2")
    a(f"s_mul_i32 s80, s38, {32*NREC}")
    a("s_lshl_b32 s81, s39, 7")
    a("s_add_u32 s80, s80, s81")
    a(f"s_add_u32 s80, s80, {NREC}")
    a("v_bfe_u32 v9, v0, 5, 1")
    a(f"v_mul_u32_u24 v9, {4*NREC}, v9")
    a(f"v_add_u32 v10, v9, v{LOFF}")
    a("v_add_u32 v10, s80, v10")
    a("s_nop 7")
    pack_a(a)
    lab=a.newlabel("K3_NW"); end=a.newlabel("K3_NWE")
    for r in range(8):
        a(f"ds_write_b32 v10, v{64+r} offset:{((r&3)+8*(r>>2))*NREC}")
    a("s_cmp_eq_u32 s38, 1")
    a(f"s_cbranch_scc1 {lab}")
    for r in range(8,16):
        a(f"ds_write_b32 v10, v{64+r} offset:{((r&3)+8*(r>>2))*NREC}")
    a(f"s_branch {end}")
    a.label(lab)
    a("s_mov_b32 exec_hi, 0")
    a(f"ds_write_b32 v10, v72 offset:{16*NREC}")
    a("s_mov_b32 exec_hi, -1")
    a.label(end)
    a.label("K3_NOW")
    a("s_waitcnt lgkmcnt(0)")
    a("s_barrier")
    stamp("wread")
    for s in issue_loads(1): a(s)
    a(f"v_readfirstlane_b32 s{sT3}, v{VCT}")
    for s in list_addr(sT3): a(s)
    for s in read_list(): a(s)
    a(f"s_cmp_ge_u32 s{sT1}, s{sNT}")
    a("s_cbranch_scc1 K3_BATCHEND")
    a.c("ring: current = T1(old) ; next = T2 ; next2 = T3")
    a(f"s_mov_b32 s{sT1}, s{sT2}")
    a(f"s_mov_b32 s{sT2}, s{sT3}")
    a("s_waitcnt vmcnt(5)")
    a.c("first tile: rows 0..15 / 16..31 of each group may belong to two nodes")
    for s in node_addr(0): a(s)
    a(f"v_add_u32_sdwa v156, v{VM}, v{LOFF} dst_sel:DWORD dst_unused:UNUSED_PAD src0_sel:WORD_0 src1_sel:DWORD")
    a(f"v_add_u32 v{NODEB2}, v156, v{LOF4}")
    for s in read_x(0): a(s)
    a(read_a(0)); a(read_a(1))
    a(f"ds_read_b32 v{BX[0]+2}, v156")
    a(f"ds_read_b32 v{BX[1]+2}, v156 offset:128")
    a("v_bfe_u32 v8, v0, 4, 1")
    a("v_cmp_eq_u32 vcc, 0, v8")
    a("v_mov_b32 v9, 0")
    a("s_nop 0")
    a(f"v_cndmask_b32 v{AX[0]}, v9, v{AX[1]}, vcc")
    a(f"v_cndmask_b32 v{AX[0]+2}, v{AX[1]}, v9, vcc")
    a("s_nop 0")
    a("s_waitcnt lgkmcnt(0)")
    for s in chain(0,0): a(s)
    a("s_nop 7"); a("s_nop 7")
    if 'prio47' in X_ or 'prio03' in X_:
        a(f"s_cmp_ge_u32 s{sWAVE}, 4")
        a("s_cbranch_scc0 K3_NOPRIO" if 'prio47' in X_ else "s_cbranch_scc1 K3_NOPRIO")
        a("s_setprio 1")
        a.label("K3_NOPRIO")
    stamp("pipe")
    tile_body(a,0,first=True)
    a("s_cbranch_scc0 K3_BATCHEND")
    a("s_branch K3_LOOP1")
    a(".p2align 3")
    a.label("K3_LOOP")
    tile_body(a,0)
    a("s_cbranch_scc0 K3_BATCHEND")
    a.label("K3_LOOP1")
    tile_body(a,1)
    a("s_cbranch_scc1 K3_LOOP")
    a.label("K3_BATCHEND")
    a("s_waitcnt vmcnt(0) lgkmcnt(0)")
    stamp("loopend")
    a.c("U waves park their U tile in their own stage area")
    a(f"s_and_b32 s37, s{sWAVE}, 1")
    a("s_cmp_eq_u32 s37, 0")
    a("s_cbranch_scc1 K3_NOU")
    a("v_bfe_u32 v9, v0, 5, 1")
    a("v_lshlrev_b32 v9, 9, v9")
    a(f"v_add_u32 v9, v9, v{LOF4}")
    a(f"v_add_u32 v9, s{sST0}, v9")
    for r in range(16):
        a(f"ds_write_b32 v9, a{AU+r} offset:{((r&3)+8*(r>>2))*128}")
    a.label("K3_NOU")
    a("v_cmp_gt_u32 vcc, 0x188, v0")
    a("v_lshrrev_b32 v16, 3, v0")
    a("v_and_b32 v17, 7, v0")
    a(f"v_mul_u32_u24 v10, {NREC}, v16")
    a("v_lshl_add_u32 v10, v17, 6, v10")
    a(f"v_add_u32 v10, {NODE+NREC}, v10")
    a("v_lshrrev_b32 v11, 5, v16")
    a("v_lshrrev_b32 v12, 2, v17")
    a("v_lshlrev_b32 v11, 13, v11")
    a("v_lshl_add_u32 v11, v12, 14, v11")
    a("v_and_b32 v12, 31, v16")
    a("v_lshl_add_u32 v11, v12, 7, v11")
    a("v_and_b32 v12, 3, v17")
    a("v_lshl_add_u32 v11, v12, 5, v11")
    a(f"v_add_u32 v11, {STAGE+4096}, v11")
    a("s_waitcnt lgkmcnt(0)")
    a("s_barrier")
    a.c("==== next batch?  mode 1: second half next ; overflow segments if any marker was seen")
    a(f"s_cmp_eq_u32 s{sMODE}, 1")
    a("s_cbranch_scc1 K3_HALF2")
    a(f"s_cmp_eq_u32 s{sOVF}, 0")
    a("s_cbranch_scc1 K3_EPI")
    a(f"v_mov_b32 v8, {OVF}")
    a("ds_read_b32 v9, v8")
    a("s_waitcnt lgkmcnt(0)")
    a("v_readfirstlane_b32 s80, v9")
    a("s_nop 3")
    a("s_cmp_eq_u32 s80, 0")
    a("s_cbranch_scc1 K3_EPI")
    a("s_lshl_b32 s81, s80, 2")
    a(f"s_add_u32 s81, s81, {OVF+12}")
    a("v_mov_b32 v8, s81")
    a("ds_read_b32 v9, v8")
    a("s_waitcnt lgkmcnt(0)")
    a("v_readfirstlane_b32 s82, v9")
    a("s_barrier")
    a("s_sub_u32 s80, s80, 1")
    a(f"v_mov_b32 v8, {OVF}")
    a("v_mov_b32 v9, s80")
    a("ds_write_b32 v8, v9")
    a("s_lshr_b32 s83, s82, 24")
    a("s_bfe_u32 s84, s82, 0xc000c")
    a("s_and_b32 s85, s82, 0xfff")
    a(f"s_mul_i32 s86, s83, {CH*4}")
    a(f"s_add_u32 s86, s86, {WS_COMPACT}")
    a("s_lshl_b32 s84, s84, 2")
    a("s_add_u32 s86, s86, s84")
    a("s_lshl_b32 s85, s85, 2")
    a(f"s_add_u32 s{sREC+2}, s86, s85")
    a(f"s_mul_i32 s83, s83, {CH}")
    a("v_mov_b32 v3, s83")
    a(f"s_mov_b32 s{sSTEP}, 0")
    a(f"s_mov_b32 s{sMODE}, 3")
    a("v_lshlrev_b32 v8, 4, v0")
    a("v_add_u32 v8, s86, v8")
    for i in range(4):
        a(f"buffer_load_dwordx4 {vr(16+4*i,4)}, v8, {sr(sREC,4)}, 0 offen")
        if i<3: a("v_add_u32 v8, 8192, v8")
    a("v_and_b32 v13, 63, v0")
    a("s_waitcnt vmcnt(0)")
    a("s_branch K3_BATCH")
    a.label("K3_INLINE")
    a(f"s_cmp_lg_u32 s{sMODE}, 0")
    a("s_cbranch_scc1 K3_INLINEDONE")
    for q,r in enumerate((9,11,13,15)):
        nxt=a.newlabel("K3_IN")
        a(f"v_and_b32 v9, 63, v{16+r}")
        a("v_cmp_eq_u32 vcc, 63, v9")
        a(f"s_cbranch_vccz {nxt}")
        a("s_ff1_i32_b64 s80, vcc")
        a("s_nop 3")
        a(f"v_readlane_b32 s81, v{16+r}, s80")
        a("s_lshr_b32 s82, s81, 18")
        a("s_cmp_gt_u32 s82, 64")
        a(f"s_cbranch_scc1 {nxt}")
        a("s_lshr_b32 s83, s80, 3")
        a(f"s_lshl_b32 s84, s{sWAVE}, 3")
        a("s_add_u32 s83, s83, s84")
        a(f"s_add_u32 s83, s83, {64*q}")
        a(f"s_mul_i32 s8, s83, {CH}")
        a("s_bfe_u32 s84, s81, 0xc0006")
        a("s_add_u32 s84, s84, s8")
        a("s_lshl_b32 s84, s84, 2")
        a(f"s_add_u32 s84, s84, {WS_COMPACT}")
        a("s_lshl_b32 s82, s82, 2")
        a(f"s_add_u32 s{sREC+2}, s84, s82")
        a("v_lshlrev_b32 v9, 2, v13")
        a("v_add_u32 v9, s84, v9")
        a(f"buffer_load_dword v96, v9, {sr(sREC,4)}, 0 offen")
        a("s_mov_b32 m0, s80")
        a("v_mov_b32 v9, 0")
        a("s_nop 0")
        a(f"v_writelane_b32 v{16+r}, 0, m0")
        a("s_waitcnt vmcnt(0)")
        a(f"s_mov_b32 s{sREC+2}, {WS_COMPACT}")
        a("s_branch K3_INLINEDONE")
        a.label(nxt)
    a("s_branch K3_INLINEDONE")
    a.label("K3_MIXCAP")
    a("v_cmp_gt_u32 vcc, 32, v11")
    a(f"s_and_b64 s[{sMIX}:{sMIX+1}], vcc, s[{sMIX}:{sMIX+1}]")
    a("s_mov_b32 s9, 32")
    a("s_branch K3_MIXCAPDONE")
    a.label("K3_CLAMP")
    for r in range(8):
        a(f"v_lshrrev_b32 v9, 4, v{48+r}")
        a("v_subrev_u32 v9, 8, v9")
        a("v_max_i32 v9, 0, v9")
        a("v_lshlrev_b32 v9, 2, v9")
        a(f"v_sub_u32 v{32+r}, v{32+r}, v9")
    for r in range(8,16):
        a(f"v_lshrrev_b32 v9, 4, v{48+r}")
        a("v_min_u32 v9, 8, v9")
        a(f"v_lshl_add_u32 v{32+r}, v9, 2, v{32+r}")
        a(f"v_lshrrev_b32 v{16+r}, 18, v{16+r}")
    a("s_branch K3_CLAMPDONE")
    a.label("K3_BATCH")
    prefill(True)
    a("s_branch K3_HIST")
    a.label("K3_SPLIT")
    a("s_waitcnt vmcnt(0) lgkmcnt(0)")
    a("s_barrier")
    a.c("node GEMM operands: A -> X regs (x_dst rows), B -> MK regs")
    a(f"s_bfe_u32 s38, s{sWAVE}, 0x10001")
    a("s_lshl_b32 s80, s38, 12")
    a(f"s_add_u32 s80, s80, {XD}")
    a(f"s_sub_u32 s80, s80, s{sST0}")
    for j in range(4):
        a(f"v_add_u32 v12, s80, v{XRD+j}")
        a(f"ds_read_b128 {vr(X+4*j,4)}, v12")
    a(f"s_and_b32 s37, s{sWAVE}, 1")
    a(f"s_lshr_b32 s39, s{sWAVE}, 2")
    a("s_lshl_b32 s80, s37, 13")
    a("s_lshl_b32 s81, s39, 10")
    a("s_add_u32 s80, s80, s81")
    a(f"s_add_u32 s80, s80, {WAU}")
    a("v_lshlrev_b32 v12, 4, v13")
    a("v_add_u32 v12, s80, v12")
    for j in range(4):
        a(f"ds_read_b128 {vr(MK+4*j,4)}, v12 offset:{j*2048}")
    a("s_waitcnt lgkmcnt(0)")
    a.c("first pass also has to finish the one-time work (node GEMM, weights) that the restart skips")
    for j in range(4):
        c = "0" if j==0 else ar(AU,16)
        a(f"v_mfma_f32_32x32x16_bf16 {ar(AU,16)}, {vr(X+4*j,4)}, {vr(MK+4*j,4)}, {c}")
    weights_read(a)
    a(f"s_and_b32 s37, s{sWAVE}, 1")
    a("s_cmp_eq_u32 s37, 1")
    a("s_cbranch_scc1 K3_SPLIT2")
    a(f"s_bfe_u32 s38, s{sWAVE}, 0x10001")
    a(f"s_lshr_b32 s39, s{sWAVE}, 2")
    a(f"s_mul_i32 s80, s38, {32*NREC}")
    a("s_lshl_b32 s81, s39, 7")
    a("s_add_u32 s80, s80, s81")
    a(f"s_add_u32 s80, s80, {NREC}")
    a("v_bfe_u32 v9, v0, 5, 1")
    a(f"v_mul_u32_u24 v9, {4*NREC}, v9")
    a(f"v_add_u32 v10, v9, v{LOFF}")
    a("v_add_u32 v10, s80, v10")
    a("s_nop 7")
    pack_a(a)
    lab=a.newlabel("K3_NW"); end=a.newlabel("K3_NWE")
    for r in range(8):
        a(f"ds_write_b32 v10, v{64+r} offset:{((r&3)+8*(r>>2))*NREC}")
    a("s_cmp_eq_u32 s38, 1")
    a(f"s_cbranch_scc1 {lab}")
    for r in range(8,16):
        a(f"ds_write_b32 v10, v{64+r} offset:{((r&3)+8*(r>>2))*NREC}")
    a(f"s_branch {end}")
    a.label(lab)
    a("s_mov_b32 exec_hi, 0")
    a(f"ds_write_b32 v10, v72 offset:{16*NREC}")
    a("s_mov_b32 exec_hi, -1")
    a.label(end)
    a.label("K3_SPLIT2")
    a("s_waitcnt lgkmcnt(0)")
    a("s_barrier")
    a(f"s_mov_b32 s{sMODE}, 1")
    rec_offsets()
    load_low((0,1))
    a("s_waitcnt vmcnt(0)")
    a("s_branch K3_BATCH")
    a.label("K3_HALF2")
    a(f"s_mov_b32 s{sMODE}, 2")
    rec_offsets()
    load_low((2,3))
    a("v_and_b32 v13, 63, v0")
    a("s_waitcnt vmcnt(0) lgkmcnt(0)")
    a("s_branch K3_BATCH")
    a.label("K3_MARKERS")
    a(f"s_mov_b32 s{sOVF}, 1")
    a("v_lshrrev_b32 v84, 3, v0")
    a("v_mov_b32 v85, 1")
    a(f"v_mov_b32 v86, {OVF}")
    a(f"s_mov_b32 s80, {TAB+63*TROW}")
    for r in (9,11,13,15):
        lab=a.newlabel("K3_MK")
        a(f"v_cmp_eq_u32 vcc, s80, v{32+r}")
        a(f"s_and_b64 vcc, vcc, s[{sM+2*r}:{sM+2*r+1}]")
        a(f"s_cbranch_vccz {lab}")
        a(f"s_andn2_b64 s[{sM+2*r}:{sM+2*r+1}], s[{sM+2*r}:{sM+2*r+1}], vcc")
        a("s_mov_b64 exec, vcc")
        a("ds_add_rtn_u32 v88, v86, v85")
        a(f"v_add_u32 v87, {64*QI(r)}, v84")
        a("v_lshlrev_b32 v87, 24, v87")
        a(f"v_bfe_u32 v89, v{16+r}, 6, 12")
        a("v_lshl_add_u32 v87, v89, 12, v87")
        a(f"v_lshrrev_b32 v89, 18, v{16+r}")
        a("v_add_u32 v87, v89, v87")
        a("s_waitcnt lgkmcnt(0)")
        a("v_lshlrev_b32 v88, 2, v88")
        a(f"ds_write_b32 v88, v87 offset:{OVF+16}")
        a("s_mov_b64 exec, -1")
        a.label(lab)
    a("s_branch K3_MARKDONE")
    a.label("K3_TAIL")
    a("v_subrev_u32 v134, 8, v129")
    a("v_max_i32 v134, 0, v134")
    a("v_mov_b32 v135, v134")
    for sh in (1,2,4,8):
        a("s_nop 1")
        a(f"v_add_u32_dpp v135, v135, v135 row_shr:{sh} row_mask:0xf bank_mask:0xf bound_ctrl:0")
    a("s_nop 1")
    a("v_add_u32_dpp v135, v135, v135 row_bcast:15 row_mask:0xa bank_mask:0xf")
    a("s_nop 1")
    a("v_add_u32_dpp v135, v135, v135 row_bcast:31 row_mask:0xc bank_mask:0xf")
    a("s_nop 1")
    a("v_readlane_b32 s80, v135, 63")
    a("v_sub_u32 v135, v135, v134")
    a("v_add_u32 v135, s81, v135")
    a("v_subrev_u32 v149, 8, v135")
    a("v_lshlrev_b32 v149, 6, v149")
    a("ds_write_b32 v9, v149 offset:32")
    a("s_add_u32 s81, s81, s80")
    a("s_mov_b32 s36, 1")
    a("s_branch K3_TAILDONE")
    a.label("K3_TAILDESC")
    a("s_mov_b32 s36, 8")
    a.label("K3_TLOOP")
    a("v_cmp_lt_u32 vcc, s36, v129")
    a("s_cbranch_vccz K3_TAILDESCDONE")
    a("s_lshl_b32 s80, s36, 4")
    a("v_subrev_u32 v84, s80, v128")
    a("v_min_u32 v84, 16, v84")
    a("v_lshl_add_u32 v84, v84, 22, v130")
    a("s_sub_u32 s80, s36, 8")
    a("v_add_u32 v85, s80, v135")
    a("v_lshlrev_b32 v85, 2, v85")
    a("s_mov_b64 exec, vcc")
    a(f"ds_write_b32 v85, v84 offset:{DESC}")
    a("v_cmp_gt_u32 vcc, 64, v85")
    a("s_and_b64 exec, exec, vcc")
    a(f"ds_write_b32 v85, v84 offset:{DESC2}")
    a("s_mov_b64 exec, -1")
    a("s_add_u32 s36, s36, 1")
    a("s_branch K3_TLOOP")
    a.label("K3_EPI")
    a("s_and_saveexec_b64 s[38:39], vcc")
    a("s_cbranch_execz K3_END")
    a("ds_read_b128 v[24:27], v11")
    a("ds_read_b128 v[28:31], v11 offset:16")
    for q in range(4):
        a(f"ds_read_b128 {vr(48+4*q,4)}, v10 offset:{256+16*q}")
        a(f"ds_read_b128 {vr(64+4*q,4)}, v10 offset:{768+16*q}")
    a(f"v_add_u32 v8, s{sNODE0}, v16")
    a("v_lshlrev_b32 v8, 7, v8")
    a("v_lshl_add_u32 v8, v17, 4, v8")
    a("s_mov_b32 s80, 0x358637bd")
    a("s_waitcnt lgkmcnt(0)")
    for i in range(8): a(f"v_cvt_f32_f64 v{32+i}, {vr(48+2*i,2)}")
    for i in range(8): a(f"v_cvt_f32_f64 v{40+i}, {vr(64+2*i,2)}")
    for i in range(8): a(f"v_add_f32 v{32+i}, s80, v{32+i}")
    for i in range(8): a(f"v_rcp_f32 v{32+i}, v{32+i}")
    a("s_nop 0")
    for i in range(8): a(f"v_fma_f32 v{24+i}, v{40+i}, v{32+i}, v{24+i}")
    for i in range(8): a(f"v_max_f32 v{24+i}, 0, v{24+i}")
    for i in range(4):
        a(f"v_lshlrev_b32 v40, 16, v{XEPI+i}")
        a(f"v_and_b32 v41, 0xffff0000, v{XEPI+i}")
        a(f"v_add_f32 v{24+2*i}, v40, v{24+2*i}")
        a(f"v_add_f32 v{25+2*i}, v41, v{25+2*i}")
    for i in range(4):
        a(f"v_cvt_pk_bf16_f32 v{44+i}, v{24+2*i}, v{25+2*i}")
    a(f"buffer_store_dwordx4 v[44:47], v8, {sr(sOUT,4)}, 0 offen")
    if STAMP:
        a("s_waitcnt vmcnt(0)")
        stamp("end"); stamp("rt1")
        a("v_and_b32 v9, 63, v0")
        a("v_cmp_eq_u32 vcc, 0, v9")
        a("s_and_b64 exec, exec, vcc")
        a("s_cbranch_execz K3_END")
        a(f"s_mov_b32 s{sREC+2}, {WS_STAMP+256*8*64}")
        a(f"s_lshl_b32 s80, s2, 3")
        a(f"s_add_u32 s80, s80, s{sWAVE}")
        a(f"s_lshl_b32 s80, s80, 6")
        a(f"s_add_u32 s80, s80, {WS_STAMP}")
        a("v_mov_b32 v8, s80")
        for i in range(len(STAMP)):
            a(f"v_mov_b32 v16, s{88+2*i}")
            a(f"v_mov_b32 v17, s{89+2*i}")
            a(f"buffer_store_dwordx2 v[16:17], v8, {sr(sREC,4)}, 0 offen offset:{8*i}")
            a("s_nop 1")
        if os.environ.get('DBGOUT'):
            a.c("dev only: stamps of workgroup 100 wave 0 into d_debug")
            a("s_cmp_eq_u32 s2, 100")
            a("s_cbranch_scc0 K3_END")
            a(f"s_cmp_eq_u32 s{sWAVE}, 0")
            a("s_cbranch_scc0 K3_END")
            a("s_load_dwordx2 s[4:5], s[0:1], 80")
            a("s_waitcnt lgkmcnt(0)")
            a("s_mov_b32 s8, s4\ns_and_b32 s9, s5, 0xffff\ns_mov_b32 s10, 256\ns_mov_b32 s11, 0x20000")
            a("v_mov_b32 v8, 0")
            for i in range(len(STAMP)):
                if STAMP[i].startswith('rt'): a(f"v_mov_b32 v16, s{88+2*i}")
                else:
                    a(f"s_sub_u32 s80, s{88+2*i}, s88"); a("v_mov_b32 v16, s80")
                a(f"buffer_store_dword v16, v8, s[8:11], 0 offen offset:{4*i}")
                a("s_nop 1")
    a.label("K3_END")
    a("s_endpgm")
    return a.text(), kdesc(name, 256, 102, 168)
```

```python
import sys
from k1 import gen_k1, K1_LDS
import k3
from k3 import gen_k3, K3_LDS
import os
k3.STAMP=os.environ['STAMP'].split(',') if os.environ.get('STAMP') else False
KN="standalone__edge_featured_mpnn_gatedgcn__graph"
hdr=open("cdna_kernels/"+KN+".s.ref").read().split("; Override launch geometry")[0]
k1,kd1=gen_k1("bucket_kernel")
k3,kd3=gen_k3(KN+"_kernel")
s=hdr
s+=f"; @launch kernel=bucket_kernel grid=(256,1,1) block=(1024,1,1) lds={K1_LDS}\n"
s+=f"; @launch kernel={KN}_kernel grid=(256,1,1) block=(512,1,1) lds={K3_LDS}\n"
s+='.amdgcn_target "amdgcn-amd-amdhsa--gfx950"\n.text\n'
OVERVIEW="""; ---------------------------------------------------------------------------------------------------------
; ---------------------------------------------------------------------------------------------------------
"""
s+=OVERVIEW+k1+k3
s+='.section .rodata,"a"\n'+kd1+kd3
out=sys.argv[1] if len(sys.argv)>1 else "cdna_kernels/"+KN+".s"
open(out,"w").write(s)
```
